```python
import torch

def _softmax(x, axis=-1):
    return torch.softmax(x, dim=axis)
def _gelu(x):
    return torch.nn.functional.gelu(x, approximate="tanh")
def _silu(x):
    return torch.nn.functional.silu(x)
def _sigmoid(x):
    return torch.sigmoid(x)
def _layernorm(x, axis=-1, eps=1e-5):
    m = x.mean(dim=axis, keepdim=True)
    v = x.var(dim=axis, keepdim=True, unbiased=False)
    return (x - m) / torch.sqrt(v + eps)
def _scatter_add(tgt, idx, src, axis=0):
    return tgt.clone().index_add_(axis, idx, src)
def _segment_sum(src, seg, n):
    out = torch.zeros((n,) + src.shape[1:], dtype=src.dtype)
    return out.index_add_(0, seg, src)
def _pad(x, pw):
    flat = tuple(v for pair in reversed(pw) for v in pair)
    return torch.nn.functional.pad(x, flat)

kernel_name = 'recurrent_scan__mha_block_cached__glu_gated_swiglu__decode'

def setup_inputs():

    _w = (lambda a: (lambda t: t.to(torch.bfloat16) if t.is_floating_point() else t)(torch.as_tensor(a)))
    def _A_setup():
        B, Sq, D = 8, 1, 576
        H, Sk, Dh = 32, 4096, 128
        return {
            "x": _w((lambda *s: torch.randn(*s, dtype=torch.bfloat16) * 0.05)(B, Sq, D)),
            "k_cache": _w((lambda *s: torch.randn(*s, dtype=torch.bfloat16) * 3.2)(B, H, Sk, Dh)),
            "v_cache": _w((lambda *s: torch.randn(*s, dtype=torch.bfloat16) * 3.2)(B, H, Sk, Dh)),
            "wq": _w((lambda *s: torch.randn(*s, dtype=torch.bfloat16) * 3.2)(D, H * Dh) * (D ** -0.5)),
            "wo": _w((lambda *s: torch.randn(*s, dtype=torch.bfloat16) * 3.2)(H * Dh, D) * ((H * Dh) ** -0.5)),
        }
    _A_in = _A_setup()

    def _B_setup():
        B, S, D, F = 8, 1, 576, 4608
        return {
            "x": _w((lambda *s: torch.randn(*s, dtype=torch.bfloat16) * 0.05)(B, S, D)),
            "w1": _w((lambda *s: torch.randn(*s, dtype=torch.bfloat16) * 0.4)(D, F) * (2.0 / D) ** 0.5),
            "w3": _w((lambda *s: torch.randn(*s, dtype=torch.bfloat16) * 0.4)(D, F) * (2.0 / D) ** 0.5),
            "w2": _w((lambda *s: torch.randn(*s, dtype=torch.bfloat16) * 0.4)(F, D) * (2.0 / F) ** 0.5),
        }
    _B_in = _B_setup()

    return {
        "A_x": _A_in["x"],
        "A_k_cache": _A_in["k_cache"],
        "A_v_cache": _A_in["v_cache"],
        "A_wq": _A_in["wq"],
        "A_wo": _A_in["wo"],
        "B_x": _B_in["x"],
        "B_w1": _B_in["w1"],
        "B_w3": _B_in["w3"],
        "B_w2": _B_in["w2"],
    }

def reference(A_x, A_k_cache, A_v_cache, A_wq, A_wo, B_x, B_w1, B_w3, B_w2):
    def _A_ref(x, k_cache, v_cache, wq, wo):
        B, Sq, D = x.shape
        H, Dh = 32, 128
        q = (lambda x, *d: x.permute(*d))((x @ wq).reshape(B, Sq, H, Dh), 0, 2, 1, 3)
        scores = torch.einsum("bhqd,bhkd->bhqk", q, k_cache) * (Dh ** -0.5)
        p = _softmax(scores, axis=-1)
        o = torch.einsum("bhqk,bhkd->bhqd", p, v_cache)
        return (lambda x, *d: x.permute(*d))(o, 0, 2, 1, 3).reshape(B, Sq, H * Dh) @ wo

    def _B_ref(x, w1, w3, w2):
        gate = torch.einsum("bsd,df->bsf", x, w1)
        up = torch.einsum("bsd,df->bsf", x, w3)
        h = _silu(gate) * up
        out = torch.einsum("bsf,fd->bsd", h, w2)
        return out

    x = A_x
    xn = _layernorm(x, axis=-1)
    s = _A_ref(xn, A_k_cache, A_v_cache, A_wq, A_wo)
    g = _silu(_B_ref(xn, B_w1, B_w3, B_w2))
    return x + s * g
```

```python
import re

TRANS = ("v_exp_f32", "v_log_f32", "v_rcp_f32", "v_rsq_f32", "v_sqrt_f32", "v_sin_f32", "v_cos_f32")

def parse_regs(tok):
    tok = tok.strip()
    tok = tok.lstrip("-")
    m = re.fullmatch(r"abs\((.*)\)", tok)
    if m: tok = m.group(1)
    m = re.fullmatch(r"\|(.*)\|", tok)
    if m: tok = m.group(1)
    m = re.fullmatch(r"([vsa])(\d+)", tok)
    if m: return {(m.group(1), int(m.group(2)))}
    m = re.fullmatch(r"([vsa])\[(\d+):(\d+)\]", tok)
    if m: return {(m.group(1), i) for i in range(int(m.group(2)), int(m.group(3)) + 1)}
    if tok == "vcc": return {("s", 106), ("s", 107)}
    if tok == "vcc_lo": return {("s", 106)}
    if tok == "vcc_hi": return {("s", 107)}
    if tok == "exec": return {("s", 126), ("s", 127)}
    if tok == "m0": return {("s", 124)}
    return set()

class Ins:
    def __init__(self, text):
        self.text = text
        t = text.split(";")[0].strip()
        self.is_label = t.endswith(":")
        self.is_dir = t.startswith(".") and not self.is_label
        self.op = "" if (self.is_label or self.is_dir or not t) else t.split()[0]
        self.label = t[:-1] if self.is_label else None
        rest = t[len(self.op):].strip() if self.op else ""
        ops = []; depth = 0; cur = ""
        for ch in rest:
            if ch in "[(": depth += 1
            if ch in "])": depth -= 1
            if ch == "," and depth == 0:
                ops.append(cur.strip()); cur = ""
            else:
                cur += ch
        if cur.strip(): ops.append(cur.strip())
        self.mods = ""
        if ops:
            parts = ops[-1].split(None, 1)
            ops[-1] = parts[0]
            if len(parts) > 1: self.mods = parts[1]
        self.ops = ops
        op = self.op
        self.valu = op.startswith("v_")
        self.mfma = op.startswith("v_mfma")
        self.dot = op.startswith("v_dot")
        self.trans = any(op.startswith(x) for x in TRANS)
        self.dpp = ("row_" in self.mods) or ("quad_perm" in self.mods) or op.endswith("_dpp")
        self.perml = op.startswith("v_permlane")
        self.rdlane = op.startswith("v_readlane") or op.startswith("v_readfirstlane")
        self.vmem = op.startswith("buffer_") or op.startswith("global_")
        self.ds = op.startswith("ds_")
        self.salu = op.startswith("s_")
        self.branch = op.startswith("s_cbranch") or op == "s_branch"
        R = [parse_regs(o) for o in ops]
        self.w = set(); self.r = set()
        self.srcC = set(); self.srcAB = set(); self.stdata = set()
        if self.valu:
            if self.perml:
                self.w = R[0] | R[1]; self.r = R[0] | R[1]
            elif op.startswith("v_cmp"):
                self.w = R[0]; self.r = set().union(*R[1:])
            elif op.startswith(("v_add_co", "v_sub_co", "v_addc_co", "v_subb_co", "v_div_scale", "v_mad_u64")):
                self.w = R[0] | R[1]; self.r = set().union(*R[2:])
            else:
                self.w = R[0]; self.r = set().union(*R[1:]) if len(R) > 1 else set()
                if op.startswith(("v_fmac", "v_dot2c", "v_writelane")) or self.dpp:
                    self.r |= R[0]
                if op.startswith("v_cndmask") and len(ops) == 3:
                    self.r |= parse_regs("vcc")
            if self.mfma:
                self.srcAB = R[1] | R[2]; self.srcC = R[3]
            if self.dot:
                if op.startswith("v_dot2c"):
                    self.srcAB = R[1] | R[2]; self.srcC = R[0]
                else:
                    self.srcAB = R[1] | R[2]; self.srcC = R[3]
        elif self.vmem:
            if "_load" in op:
                if "lds" in self.mods.split():
                    self.r = set().union(*R)
                else:
                    self.w = R[0]; self.r = set().union(*R[1:])
            elif "_store" in op:
                self.r = set().union(*R)
                self.stdata = R[0] if op.startswith("buffer_") else R[1]
                if not (op.endswith("x3") or op.endswith("x4")): self.stdata = set()
            elif "_atomic" in op:
                self.r = set().union(*R)
                if "sc0" in self.mods.split():
                    self.w = R[0]
            else:
                pass
        elif self.ds:
            if op.startswith(("ds_read", "ds_bpermute", "ds_permute", "ds_swizzle")) or "_rtn" in op:
                self.w = R[0]; self.r = set().union(*R[1:])
            else:
                self.r = set().union(*R)
        elif self.salu:
            if op.startswith(("s_cmp", "s_cbranch", "s_branch", "s_waitcnt", "s_nop", "s_barrier", "s_endpgm", "s_sleep", "s_setprio")):
                self.r = set().union(*R) if R else set()
            else:
                self.w = R[0] if R else set(); self.r = set().union(*R[1:]) if len(R) > 1 else set()
        self.states = 0 if (self.is_label or self.is_dir or not op) else 1
        if op == "s_nop": self.states = int(ops[0], 0) + 1

def vonly(s): return {x for x in s if x[0] in "va"}
def sonly(s): return {x for x in s if x[0] == "s"}

def mfma_passes(op):
    if "32x32x16" in op or "32x32x8" in op: return 8
    if "16x16x32" in op or "16x16x16" in op: return 4
    raise ValueError(op)

def required(p, c):
    req = 0
    if p.valu and not p.mfma:
        pw = vonly(p.w); ps = sonly(p.w)
        if c.valu:
            if c.mfma and (pw & c.r): req = max(req, 2)
            if c.dpp and (pw & c.r): req = max(req, 2)
            if c.perml and (pw & c.r): req = max(req, 2)
            if c.rdlane and (pw & c.r): req = max(req, 1)
            if p.trans and (pw & c.r): req = max(req, 1)
            if ps & c.r: req = max(req, 4 if (c.op.startswith("v_readlane") or c.op.startswith("v_writelane") or c.op.startswith("v_div_fmas")) else 2)
        if c.vmem and (ps & c.r): req = max(req, 5)
        if c.salu and (ps & c.r): req = max(req, 1)
        if p.dot:
            if (pw & (c.r | c.w)):
                if c.op == p.op and (pw & c.srcC) and not (pw & c.srcAB): pass
                else: req = max(req, 3)
    if p.mfma:
        n = mfma_passes(p.op)
        pw = p.w
        if c.mfma:
            if pw & c.srcAB: req = max(req, {4: 8, 8: 12}[n])
            if pw & c.srcC:
                if not (pw == c.srcC and mfma_passes(c.op) == n): req = max(req, {4: 6, 8: 10}[n])
            elif pw & c.w: req = max(req, {4: 8, 8: 12}[n])
        elif (c.valu or c.vmem or c.ds) and (pw & (c.r | c.w)):
            req = max(req, {4: 8, 8: 12}[n])
        if c.valu and not c.mfma and (p.srcC & c.w): req = max(req, {4: 3, 8: 7}[n])
    if p.vmem and p.stdata and (p.stdata & c.w):
        req = max(req, 2)
    if p.salu and (("s", 124) in p.w) and c.vmem and "lds" in c.mods.split(): req = max(req, 1)
    return req

WIN = 16

class Asm:
    def __init__(self):
        self.L = []
    def __call__(self, s, *a):
        if a: s = s % a
        for line in s.split("\n"):
            line = line.strip()
            if line: self.L.append(line)
    def label(self, n): self.L.append(n + ":")
    def finalize(self):
        ins = [Ins(t) for t in self.L]
        out = []
        for c in ins:
            if c.states and c.op != "s_nop":
                need = 0; dist = 0
                for p in reversed(out):
                    if dist >= WIN: break
                    if p.op in ("s_branch", "s_endpgm"): break
                    if p.states:
                        r = required(p, c)
                        if r - dist > need: need = r - dist
                        dist += p.states
                if need > 0:
                    out.append(Ins("s_nop %d" % (need - 1)))
            out.append(c)
        changed = True
        while changed:
            changed = False
            lab = {x.label: i for i, x in enumerate(out) if x.is_label}
            for bi, b in enumerate(out):
                if not b.branch: continue
                tgt = lab[b.ops[0]]
                need = 0
                dc = 0
                for ci in range(tgt, min(len(out), tgt + 40)):
                    c = out[ci]
                    if dc >= WIN: break
                    if c.states:
                        dist = dc + 1
                        for pi in range(bi - 1, max(-1, bi - 40), -1):
                            p = out[pi]
                            if dist >= WIN: break
                            if p.op in ("s_branch", "s_endpgm"): break
                            if p.states:
                                r = required(p, c)
                                if r - dist > need: need = r - dist
                                dist += p.states
                        dc += c.states
                        if c.op in ("s_branch", "s_endpgm"): break
                if need > 0:
                    out.insert(bi, Ins("s_nop %d" % (need - 1)))
                    changed = True
                    break
        return "\n".join(("" if (x.is_label or x.is_dir) else "    ") + x.text for x in out) + "\n"
```

```python
import sys
from asmlib import Asm
NAME = "recurrent_scan__mha_block_cached__glu_gated_swiglu__decode"

HEADER = open("cdna_kernels/%s.s.ref" % NAME).read().split("; Override launch")[0]

LOG2E = 0x3fb8aa3b
SCALE = 0x3db504f3
INV576 = 0x3ae38e39
EPS = 0x3727c5ac

L_QP = 0
L_OP = 4096
L_ST = 8192
L_G = 8448
L_OD = 10752
L_P = 15360
PG = 528
L_XA = L_P + 8 * 4 * PG
L_END = L_XA + 9 * 1024

WS_MP = 1 << 20
WS_TS = 4 << 20

def gen(R=8, LA=4, pol="nt", wpol="", ts=False, poll_sleep=1):
    a = Asm()
    sX, sK, sV, sWQ, sWO, sW1, sW3, sW2, sOUT, sDBG, sWS = 4, 6, 8, 10, 12, 16, 18, 20, 22, 24, 26
    sWAVE = 3
    sB, sH, sBH = 28, 29, 30
    sT0, sT1, sT2, sT3 = 31, 32, 33, 34
    sCNT = 35
    rKV = 36
    rA = 40
    rB = 44
    rWS = 48
    sVlo, sVhi = 52, 53
    sOFF = 54
    sOFF0 = 55
    sM1, sM2 = 56, 58
    sSEL0, sSEL1 = 60, 61
    sTS = 62
    sTSB = 64
    sU = 66
    sCONS = 67
    sE = 68
    vLane, vOff16, vXf = 1, 2, 3
    vM = 4; vQ = 8; vS = 12; vAcc = 20; vA0 = 24; vA1 = 28; vP0 = 32; vP1 = 36
    vT = 40
    vRing = 64
    vW = 96
    assert vRing + 4 * R <= vW
    tsn = [0]
    def stamp(tag):
        if not ts: return
        k = tsn[0]; tsn[0] += 1
        a("s_memrealtime s[%d:%d]" % (sTS, sTS + 1))
        a("s_waitcnt lgkmcnt(0)")
        a("v_mov_b32 v62, s%d" % sTS)
        a("v_mov_b32 v63, s%d" % sTSB)
        a("buffer_store_dword v62, v63, s[%d:%d], 0 offen offset:%d" % (rWS, rWS + 3, 4 * k))
    def srd(r, lo, hi, nrec):
        a("s_mov_b32 s%d, 0x%x" % (r + 2, nrec))
        a("s_mov_b32 s%d, 0x20000" % (r + 3))
    def srd_off(r, base, soff, nrec):
        a("s_add_u32 s%d, s%d, s%d" % (r, base, soff))
        a("s_addc_u32 s%d, s%d, 0" % (r + 1, base + 1))
        if isinstance(nrec, int):
            a("s_mov_b32 s%d, 0x%x" % (r + 2, nrec))
        else:
            a(nrec % (r + 2))
        a("s_mov_b32 s%d, 0x20000" % (r + 3))
    def wave_reduce(op, v, sdst):
        for r in (8, 4, 2, 1):
            a("%s_dpp v%d, v%d, v%d row_ror:%d row_mask:0xf bank_mask:0xf" % (op, v, v, v, r))
        a("%s_dpp v%d, v%d, v%d row_bcast:15 row_mask:0xa bank_mask:0xf" % (op, v, v, v))
        a("%s_dpp v%d, v%d, v%d row_bcast:31 row_mask:0xc bank_mask:0xf" % (op, v, v, v))
        a("v_readlane_b32 s%d, v%d, 63" % (sdst, v))
    def rbf(d, s):
        a("v_cvt_pk_bf16_f32 v%d, v%d, v%d" % (d, s, s))
        a("v_and_b32 v%d, 0xffff0000, v%d" % (d, d))
    def ln_scalars(vmean, vvar, vmb, vsd, vrs):
        rbf(vmb, vmean)
        rbf(vsd, vvar)
        a("v_add_f32 v%d, 0x%x, v%d" % (vsd, EPS, vsd))
        rbf(vsd, vsd)
        a("v_sqrt_f32 v%d, v%d" % (vsd, vsd))
        rbf(vsd, vsd)
        a("v_rcp_f32 v%d, v%d" % (vrs, vsd))
    def div1(d, n, vsd, vrs, t):
        a("v_mul_f32 v%d, v%d, v%d" % (d, n, vrs))
        a("v_fma_f32 v%d, -v%d, v%d, v%d" % (t, d, vsd, n))
        a("v_fma_f32 v%d, v%d, v%d, v%d" % (d, t, vrs, d))
    def silu(d, x, t):
        a("v_mul_f32 v%d, 0x%x, v%d" % (t, LOG2E | 0x80000000, x))
        a("v_exp_f32 v%d, v%d" % (t, t))
        a("v_add_f32 v%d, 1.0, v%d" % (t, t))
        a("v_rcp_f32 v%d, v%d" % (t, t))
        a("v_mul_f32 v%d, v%d, v%d" % (d, x, t))

    K = NAME + "_kernel"
    a.label(K)
    a("s_cmp_ge_u32 s2, 256")
    a("s_cbranch_scc1 L_end")
    a("s_load_dwordx16 s[4:19], s[0:1], 0")
    a("s_load_dwordx8 s[20:27], s[0:1], 64")
    a("v_lshrrev_b32 v2, 6, v0")
    a("v_and_b32 v%d, 63, v0" % vLane)
    a("v_readfirstlane_b32 s%d, v2" % sWAVE)
    a("v_lshlrev_b32 v%d, 4, v%d" % (vOff16, vLane))
    a("s_and_b32 s%d, s2, 31" % sH)
    a("s_lshr_b32 s%d, s2, 5" % sB)
    a("s_lshl_b32 s%d, s2, 20" % sBH)
    a("s_lshl_b32 s%d, s%d, 12" % (sOFF0, sWAVE))
    a("s_mul_i32 s%d, s%d, 1152" % (sT0, sB))
    a("s_lshl_b32 s%d, s%d, 8" % (sT1, sH))
    a("s_waitcnt lgkmcnt(0)")
    a("s_mov_b32 s%d, s%d" % (rWS, sWS)); a("s_mov_b32 s%d, s%d" % (rWS + 1, sWS + 1))
    srd(rWS, 0, 0, 8 << 20)
    if ts:
        a("s_mul_i32 s%d, s2, 9" % sTSB); a("s_add_u32 s%d, s%d, s%d" % (sTSB, sTSB, sWAVE))
        a("s_lshl_b32 s%d, s%d, 6" % (sTSB, sTSB)); a("s_add_u32 s%d, s%d, 0x%x" % (sTSB, sTSB, WS_TS))
    srd_off(rA, sX, sT0, 1160)
    a("s_cmp_eq_u32 s%d, 8" % sWAVE)
    a("s_cbranch_scc1 L_aux")
    vX = 12
    a("v_mul_u32_u24 v%d, 18, v%d" % (vT, vLane))
    for t in range(9):
        a("buffer_load_ushort v%d, v%d, s[%d:%d], 0 offen offset:%d" % (vX + t, vT, rA, rA + 3, 2 * t))
    srd_off(rB, sWQ, sT1, "s_sub_u32 s%%d, 0x%x, s%d" % (576 * 8192, sT1))
    a("v_lshrrev_b32 v%d, 4, v%d" % (vT + 1, vLane))
    a("v_and_b32 v%d, 15, v%d" % (vT + 2, vLane))
    a("v_mul_u32_u24 v%d, 0x%x, v%d" % (vT + 3, 18 * 8192, vT + 1))
    a("v_lshl_add_u32 v%d, v%d, 4, v%d" % (vT + 3, vT + 2, vT + 3))
    a("s_mul_i32 s%d, s%d, 0x%x" % (sT2, sWAVE, 72 * 8192))
    for i in range(18):
        a("buffer_load_dwordx4 v[%d:%d], v%d, s[%d:%d], s%d offen %s" % (vW + 4 * i, vW + 4 * i + 3, vT + 3, rB, rB + 3, sT2, wpol))
        if i < 17: a("s_add_u32 s%d, s%d, 0x2000" % (sT2, sT2))
    srd_off(rKV, sK, sBH, 1 << 20)
    a("s_add_u32 s%d, s%d, s%d" % (sVlo, sV, sBH)); a("s_addc_u32 s%d, s%d, 0" % (sVhi, sV + 1))
    a("s_mov_b32 s%d, s%d" % (sOFF, sOFF0))
    def issue(n, switch):
        j = n % 4; r = vRing + 4 * (n % R)
        a("buffer_load_dwordx4 v[%d:%d], v%d, s[%d:%d], s%d offen offset:%d %s" % (r, r + 3, vOff16, rKV, rKV + 3, sOFF, j * 1024, pol))
        if j == 3:
            a("s_add_u32 s%d, s%d, 0x8000" % (sOFF, sOFF))
            if switch:
                a("s_cmp_ge_u32 s%d, 0x100000" % sOFF)
                a("s_cselect_b32 s%d, s%d, s%d" % (rKV, sVlo, rKV))
                a("s_cselect_b32 s%d, s%d, s%d" % (rKV + 1, sVhi, rKV + 1))
                a("s_and_b32 s%d, s%d, 0xfffff" % (sOFF, sOFF))
    for n in range(R):
        issue(n, False)
    stamp("issued")
    nst = 1 if ts else 0
    def xfin_addr(d, t):
        a("v_lshrrev_b32 v%d, 4, v%d" % (t, vLane))
        a("v_bfrev_b32 v%d, v%d" % (t, t))
        a("v_lshrrev_b32 v%d, 30, v%d" % (t, t))
        a("v_and_b32 v%d, 15, v%d" % (d, vLane))
        a("v_lshl_add_u32 v%d, v%d, 2, v%d" % (d, d, t))
    def make_masks():
        a("v_and_b32 v%d, 1, v%d" % (vT + 4, vLane))
        a("v_lshlrev_b32 v%d, 4, v%d" % (vT + 4, vT + 4))
        a("v_mov_b32 v%d, 0xffff" % (vT + 5))
        a("v_lshlrev_b32 v%d, v%d, v%d" % (vT + 4, vT + 4, vT + 5))
        a("v_bfe_u32 v%d, v%d, 1, 2" % (vT + 5, vLane))
        for r in range(4):
            a("v_cmp_eq_u32 vcc, %d, v%d" % (r, vT + 5))
            a("v_cndmask_b32 v%d, 0, v%d, vcc" % (vM + r, vT + 4))
    make_masks()
    a("s_mov_b32 s%d, 0xaaaaaaaa" % sM1); a("s_mov_b32 s%d, 0xaaaaaaaa" % (sM1 + 1))
    a("s_mov_b32 s%d, 0xcccccccc" % sM2); a("s_mov_b32 s%d, 0xcccccccc" % (sM2 + 1))
    vBP = vT + 20
    a("s_lshl_b32 s%d, s%d, 5" % (sT2, sWAVE))
    a("v_lshl_add_u32 v%d, v%d, 3, s%d" % (vBP, vT + 1, sT2))
    a("s_waitcnt vmcnt(%d)" % (18 + R + nst))
    for t in range(9):
        a("v_lshlrev_b32 v%d, 16, v%d" % (vX + t, vX + t))
    vs = vT + 6
    a("v_add_f32 v%d, v%d, v%d" % (vs, vX, vX + 1))
    for t in range(2, 9):
        a("v_add_f32 v%d, v%d, v%d" % (vs, vs, vX + t))
    wave_reduce("v_add_f32", vs, sT2)
    vmean = vT + 7
    a("v_mov_b32 v%d, 0x%x" % (vmean, INV576))
    a("v_mul_f32 v%d, s%d, v%d" % (vmean, sT2, vmean))
    a("v_sub_f32 v%d, v%d, v%d" % (vT + 8, vX, vmean))
    a("v_mul_f32 v%d, v%d, v%d" % (vs, vT + 8, vT + 8))
    for t in range(1, 9):
        a("v_sub_f32 v%d, v%d, v%d" % (vT + 8, vX + t, vmean))
        a("v_fmac_f32 v%d, v%d, v%d" % (vs, vT + 8, vT + 8))
    wave_reduce("v_add_f32", vs, sT2)
    vvar = vT + 8
    a("v_mov_b32 v%d, 0x%x" % (vvar, INV576))
    a("v_mul_f32 v%d, s%d, v%d" % (vvar, sT2, vvar))
    vmb, vsd, vrs = vT + 9, vT + 10, vT + 11
    ln_scalars(vmean, vvar, vmb, vsd, vrs)
    for t in range(9):
        a("v_sub_f32 v%d, v%d, v%d" % (vX + t, vX + t, vmb))
    for t in range(9):
        rbf(vX + t, vX + t)
    for t in range(9):
        div1(vT + 12, vX + t, vsd, vrs, vT + 13)
        a("v_cvt_pk_bf16_f32 v%d, v%d, v%d" % (vX + t, vT + 12, vT + 12))
    vXA = vT
    for i in range(18):
        a("ds_bpermute_b32 v%d, v%d, v%d offset:%d" % (vXA + i, vBP, vX + (i % 9), 4 if i >= 9 else 0))
    a("s_waitcnt lgkmcnt(0)")
    stamp("ln")
    if ts: nst += 1
    for i in range(18):
        A = vA0 if i % 2 == 0 else vA1
        for r in range(4):
            a("v_and_b32 v%d, v%d, v%d" % (A + r, vXA + i, vM + r))
        a("s_waitcnt vmcnt(%d)" % (17 - i + R + nst))
        a("v_mfma_f32_16x16x32_bf16 v[%d:%d], v[%d:%d], v[%d:%d], %s" % (vAcc, vAcc + 3, A, A + 3, vW + 4 * i, vW + 4 * i + 3, "0" if i == 0 else "v[%d:%d]" % (vAcc, vAcc + 3)))
    vPA = vT + 21
    a("v_and_b32 v%d, 15, v%d" % (vT, vLane))
    a("v_bfe_u32 v%d, v%d, 4, 1" % (vT + 1, vLane))
    a("v_lshlrev_b32 v%d, 5, v%d" % (vT, vT))
    a("v_lshl_add_u32 v%d, v%d, 4, v%d" % (vPA, vT + 1, vT))
    a("s_lshl_b32 s%d, s%d, 9" % (sT2, sWAVE))
    a("v_add_u32 v%d, s%d, v%d" % (vPA, sT2, vPA))
    a("ds_write_b128 v%d, v[%d:%d] offset:%d" % (vPA, vAcc, vAcc + 3, L_QP))
    def wo_loads():
        a("s_mul_i32 s%d, s%d, 0x%x" % (sT2, sH, 128 * 1152))
        a("s_lshl_b32 s%d, s%d, 7" % (sT3, sWAVE))
        a("s_add_u32 s%d, s%d, s%d" % (sT2, sT2, sT3))
        srd_off(rB, sWO, sT2, "s_sub_u32 s%%d, 0x%x, s%d" % (4096 * 1152, sT2))
        a("v_lshrrev_b32 v%d, 3, v%d" % (vT + 2, vLane))
        a("v_and_b32 v%d, 7, v%d" % (vT + 3, vLane))
        a("v_mul_u32_u24 v%d, 0x%x, v%d" % (vT + 2, 16 * 1152, vT + 2))
        a("v_lshl_add_u32 v%d, v%d, 4, v%d" % (vT + 2, vT + 3, vT + 2))
        a("s_mov_b32 s%d, 0" % sT2)
        for i in range(16):
            a("buffer_load_dwordx4 v[%d:%d], v%d, s[%d:%d], s%d offen offset:%d %s" % (vW + 4 * i, vW + 4 * i + 3, vT + 2, rB, rB + 3, sT2, (i % 2) * 1152, wpol))
            if i % 2 == 1 and i < 15: a("s_add_u32 s%d, s%d, 2304" % (sT2, sT2))
        xfin_addr(vT + 4, vT + 5)
        a("s_lshl_b32 s%d, s%d, 7" % (sT3, sWAVE))
        a("v_lshlrev_b32 v%d, 1, v%d" % (vT + 4, vT + 4))
        a("buffer_load_ushort v%d, v%d, s[%d:%d], s%d offen" % (vXf, vT + 4, rA, rA + 3, sT3))
    wo_loads()
    a("s_waitcnt lgkmcnt(0)")
    a("s_barrier")
    a("v_and_b32 v%d, 15, v%d" % (vT + 22, vLane))
    a("v_lshlrev_b32 v%d, 5, v%d" % (vT + 22, vT + 22))
    a("ds_read_b128 v[24:27], v%d offset:%d" % (vT + 22, L_QP))
    a("ds_read_b128 v[28:31], v%d offset:%d" % (vT + 22, L_QP + 16))
    bufs = [32, 40, 48]
    for w in range(1, 4):
        t = bufs[(w - 1) % 3]
        a("ds_read_b128 v[%d:%d], v%d offset:%d" % (t, t + 3, vT + 22, L_QP + w * 512))
        a("ds_read_b128 v[%d:%d], v%d offset:%d" % (t + 4, t + 7, vT + 22, L_QP + w * 512 + 16))
    for w in range(1, 8):
        t = bufs[(w - 1) % 3]
        rem = min(7, w + 2) - w
        a("s_waitcnt lgkmcnt(%d)" % (2 * rem))
        for e in range(0, 8, 2):
            a("v_pk_add_f32 v[%d:%d], v[%d:%d], v[%d:%d]" % (24 + e, 25 + e, 24 + e, 25 + e, t + e, t + e + 1))
        if w + 3 < 8:
            a("ds_read_b128 v[%d:%d], v%d offset:%d" % (t, t + 3, vT + 22, L_QP + (w + 3) * 512))
            a("ds_read_b128 v[%d:%d], v%d offset:%d" % (t + 4, t + 7, vT + 22, L_QP + (w + 3) * 512 + 16))
    for r in range(4):
        a("v_cvt_pk_bf16_f32 v%d, v%d, v%d" % (vQ + r, 24 + 2 * r, 25 + 2 * r))
    stamp("q")
    vPa, vPb, vR0, vR1, vT0_, vT1_, vU0, vU1, vK, vSd = vT, vT + 1, vT + 2, vT + 3, vT + 4, vT + 5, vT + 6, vT + 7, vT + 8, vT + 9
    a("s_mov_b32 s%d, 0" % sCNT)
    a.label("L_kloop")
    for n in range(16):
        a("s_waitcnt vmcnt(%d)" % (LA - 1))
        if n < R - LA:
            a("s_cmp_eq_u32 s%d, 0" % sCNT)
            a("s_cbranch_scc1 L_ksk%d" % n)
        issue(n + LA, True)
        if n < R - LA:
            a.label("L_ksk%d" % n)
        P = vPa if n % 2 == 0 else vPb
        r = vRing + 4 * (n % R)
        for d in range(4):
            a("v_dot2_f32_bf16 v%d, v%d, v%d, %s" % (P, r + d, vQ + d, "0" if d == 0 else "v%d" % P))
        if n % 2 == 1:
            Rr = vR0 if (n >> 1) % 2 == 0 else vR1
            a("v_add_f32_dpp v%d, v%d, v%d row_ror:8 row_mask:0xf bank_mask:0x3" % (Rr, vPa, vPa))
            a("v_add_f32_dpp v%d, v%d, v%d row_ror:8 row_mask:0xf bank_mask:0xc" % (Rr, vPb, vPb))
        if n % 4 == 3:
            Tt = vT0_ if (n >> 2) % 2 == 0 else vT1_
            a("v_add_f32_dpp v%d, v%d, v%d row_shl:4 row_mask:0xf bank_mask:0x5" % (Tt, vR0, vR0))
            a("v_add_f32_dpp v%d, v%d, v%d row_shr:4 row_mask:0xf bank_mask:0xa" % (Tt, vR1, vR1))
        if n % 8 == 7:
            U = vU0 if (n >> 3) == 0 else vU1
            a("v_cndmask_b32 v%d, v%d, v%d, s[%d:%d]" % (vK, vT0_, vT1_, sM2, sM2 + 1))
            a("v_cndmask_b32 v%d, v%d, v%d, s[%d:%d]" % (vSd, vT1_, vT0_, sM2, sM2 + 1))
            a("v_add_f32_dpp v%d, v%d, v%d quad_perm:[2,3,0,1] row_mask:0xf bank_mask:0xf" % (U, vSd, vK))
        if n == 15:
            a("v_cndmask_b32 v%d, v%d, v%d, s[%d:%d]" % (vK, vU0, vU1, sM1, sM1 + 1))
            a("v_cndmask_b32 v%d, v%d, v%d, s[%d:%d]" % (vSd, vU1, vU0, sM1, sM1 + 1))
            for t in range(7):
                a("v_mov_b32 v%d, v%d" % (vS + t, vS + t + 1))
            a("v_add_f32_dpp v%d, v%d, v%d quad_perm:[1,0,3,2] row_mask:0xf bank_mask:0xf" % (vK, vSd, vK))
            rbf(vK, vK)
            a("v_mul_f32 v%d, 0x%x, v%d" % (vK, SCALE, vK))
            rbf(vS + 7, vK)
    a("s_add_u32 s%d, s%d, 1" % (sCNT, sCNT))
    a("s_cmp_lt_u32 s%d, 8" % sCNT)
    a("s_cbranch_scc1 L_kloop")
    for n in range(LA, R):
        issue(n, False)
    stamp("kdone")
    vm = vT
    a("v_max3_f32 v%d, v%d, v%d, v%d" % (vm, vS, vS + 1, vS + 2))
    a("v_max3_f32 v%d, v%d, v%d, v%d" % (vm, vm, vS + 3, vS + 4))
    a("v_max3_f32 v%d, v%d, v%d, v%d" % (vm, vm, vS + 5, vS + 6))
    a("v_max_f32 v%d, v%d, v%d" % (vm, vm, vS + 7))
    wave_reduce("v_max_f32", vm, sT2)
    for t in range(8):
        a("v_subrev_f32 v%d, s%d, v%d" % (vT + 2 + t, sT2, vS + t))
    for t in range(8):
        a("v_mul_f32 v%d, 0x%x, v%d" % (vT + 2 + t, LOG2E, vT + 2 + t))
    for t in range(8):
        a("v_exp_f32 v%d, v%d" % (vT + 2 + t, vT + 2 + t))
    a("v_add_f32 v%d, v%d, v%d" % (vT + 1, vT + 2, vT + 3))
    for t in range(2, 8):
        a("v_add_f32 v%d, v%d, v%d" % (vT + 1, vT + 1, vT + 2 + t))
    wave_reduce("v_add_f32", vT + 1, sT3)
    a("v_mov_b32 v%d, s%d" % (vT + 2, sT2)); a("v_mov_b32 v%d, s%d" % (vT + 3, sT3))
    a("s_lshl_b32 s%d, s%d, 3" % (sT2, sWAVE))
    a("v_mov_b32 v%d, s%d" % (vT + 4, sT2))
    a("s_mov_b64 exec, 1")
    a("ds_write_b64 v%d, v[%d:%d] offset:%d" % (vT + 4, vT + 2, vT + 3, L_ST))
    a("s_mov_b64 exec, -1")
    vPW, vPR = vT + 12, vT + 13
    a("v_lshrrev_b32 v%d, 4, v%d" % (vT + 5, vLane))
    a("v_mul_u32_u24 v%d, %d, v%d" % (vPR, PG, vT + 5))
    a("s_mul_i32 s%d, s%d, %d" % (sT2, sWAVE, 4 * PG))
    a("v_add_u32 v%d, s%d, v%d" % (vPR, sT2, vPR))
    a("v_bfrev_b32 v%d, v%d" % (vT + 5, vLane))
    a("v_lshrrev_b32 v%d, 26, v%d" % (vT + 5, vT + 5))
    a("v_and_b32 v%d, 60, v%d" % (vT + 5, vT + 5))
    a("v_add_u32 v%d, v%d, v%d" % (vPW, vPR, vT + 5))
    a("v_and_b32 v%d, 7, v%d" % (vT + 5, vLane))
    a("v_lshlrev_b32 v%d, 3, v%d" % (vT + 5, vT + 5))
    a("s_waitcnt lgkmcnt(0)")
    a("s_barrier")
    a("ds_read_b64 v[%d:%d], v%d offset:%d" % (vT + 2, vT + 3, vT + 5, L_ST))
    a("s_waitcnt lgkmcnt(0)")
    vMx = vT + 4
    a("v_max_f32_dpp v%d, v%d, v%d row_ror:4 row_mask:0xf bank_mask:0xf" % (vMx, vT + 2, vT + 2))
    a("v_max_f32_dpp v%d, v%d, v%d row_ror:2 row_mask:0xf bank_mask:0xf" % (vMx, vMx, vMx))
    a("v_max_f32_dpp v%d, v%d, v%d row_ror:1 row_mask:0xf bank_mask:0xf" % (vMx, vMx, vMx))
    a("v_sub_f32 v%d, v%d, v%d" % (vT + 2, vT + 2, vMx))
    for t in range(8):
        a("v_sub_f32 v%d, v%d, v%d" % (vS + t, vS + t, vMx))
    a("v_mul_f32 v%d, 0x%x, v%d" % (vT + 2, LOG2E, vT + 2))
    for t in range(8):
        a("v_mul_f32 v%d, 0x%x, v%d" % (vS + t, LOG2E, vS + t))
    a("v_exp_f32 v%d, v%d" % (vT + 2, vT + 2))
    for t in range(8):
        a("v_exp_f32 v%d, v%d" % (vS + t, vS + t))
    a("v_mul_f32 v%d, v%d, v%d" % (vT + 2, vT + 2, vT + 3))
    for r in (4, 2, 1):
        a("v_add_f32_dpp v%d, v%d, v%d row_ror:%d row_mask:0xf bank_mask:0xf" % (vT + 2, vT + 2, vT + 2, r))
    a("v_rcp_f32 v%d, v%d" % (vT + 3, vT + 2))
    for t in range(8):
        div1(vT + 4, vS + t, vT + 2, vT + 3, vT + 5)
        a("v_cvt_pk_bf16_f32 v%d, v%d, v%d" % (vS + t, vT + 4, vT + 4))
        a("ds_write_b32 v%d, v%d offset:%d" % (vPW, vS + t, L_P + 64 * t))
    a("ds_read_b128 v[%d:%d], v%d offset:%d" % (vP0, vP0 + 3, vPR, L_P))
    for r in range(4):
        a("v_mov_b32 v%d, 0" % (vAcc + r))
    stamp("sm")
    a("s_mov_b32 s%d, 0" % sCNT)
    a.label("L_vloop")
    for n in range(16):
        Pc = vP0 if (n >> 2) % 2 == 0 else vP1
        Pn = vP1 if (n >> 2) % 2 == 0 else vP0
        if n % 4 == 0:
            a("s_waitcnt lgkmcnt(0)")
            a("ds_read_b128 v[%d:%d], v%d offset:%d" % (Pn, Pn + 3, vPR, L_P + 4 * n + 16))
        A = vA0 if n % 2 == 0 else vA1
        for r in range(4):
            a("v_and_b32 v%d, v%d, v%d" % (A + r, Pc + (n % 4), vM + r))
        a("s_waitcnt vmcnt(%d)" % (LA - 1))
        if n < R - LA:
            a("s_cmp_eq_u32 s%d, 0" % sCNT)
            a("s_cbranch_scc1 L_vsk%d" % n)
        issue(n + LA, False)
        if n < R - LA:
            a.label("L_vsk%d" % n)
        r = vRing + 4 * (n % R)
        a("v_mfma_f32_16x16x32_bf16 v[%d:%d], v[%d:%d], v[%d:%d], v[%d:%d]" % (vAcc, vAcc + 3, A, A + 3, r, r + 3, vAcc, vAcc + 3))
    a("v_add_u32 v%d, 64, v%d" % (vPR, vPR))
    a("s_add_u32 s%d, s%d, 1" % (sCNT, sCNT))
    a("s_cmp_lt_u32 s%d, 8" % sCNT)
    a("s_cbranch_scc1 L_vloop")
    a("ds_write_b128 v%d, v[%d:%d] offset:%d" % (vPA, vAcc, vAcc + 3, L_OP))
    stamp("vdone")
    a.label("L_tail")
    a("v_lshlrev_b32 v%d, 3, v%d" % (vT, vLane))
    a("s_lshl_b32 s%d, s%d, 9" % (sT2, sWAVE))
    a("v_add_u32 v%d, s%d, v%d" % (vT + 1, sT2, vT))
    a("v_lshrrev_b32 v%d, 3, v%d" % (vT + 2, vLane))
    a("v_lshlrev_b32 v%d, 6, v%d" % (vT + 2, vT + 2))
    a("v_add_u32 v%d, s%d, v%d" % (vT + 2, sT2, vT + 2))
    a("v_and_b32 v%d, 7, v%d" % (vT + 3, vLane))
    a("v_lshrrev_b32 v%d, 4, v%d" % (vT + 4, vLane))
    a("v_lshlrev_b32 v%d, 5, v%d" % (vT + 3, vT + 3))
    a("v_lshl_add_u32 v%d, v%d, 4, v%d" % (vT + 3, vT + 4, vT + 3))
    a("s_mul_i32 s%d, s2, 2304" % sT2)
    a("s_lshl_b32 s%d, s%d, 8" % (sU, sWAVE))
    a("s_add_u32 s%d, s%d, s%d" % (sT2, sT2, sU))
    a("s_waitcnt lgkmcnt(0)")
    a("s_barrier")
    for w in range(8):
        a("ds_read_b64 v[%d:%d], v%d offset:%d" % (24 + 2 * w, 25 + 2 * w, vT, L_OP + 512 * w))
    a("s_waitcnt lgkmcnt(4)")
    a("v_pk_add_f32 v[24:25], v[24:25], v[26:27]")
    a("v_pk_add_f32 v[28:29], v[28:29], v[30:31]")
    a("s_waitcnt lgkmcnt(0)")
    a("v_pk_add_f32 v[32:33], v[32:33], v[34:35]")
    a("v_pk_add_f32 v[36:37], v[36:37], v[38:39]")
    a("v_pk_add_f32 v[24:25], v[24:25], v[28:29]")
    a("v_pk_add_f32 v[32:33], v[32:33], v[36:37]")
    a("v_pk_add_f32 v[24:25], v[24:25], v[32:33]")
    a("v_cvt_pk_bf16_f32 v24, v24, v24")
    a("v_cvt_pk_bf16_f32 v25, v25, v25")
    a("ds_write_b64 v%d, v[24:25] offset:%d" % (vT + 1, L_OD))
    vO = 64
    a("s_waitcnt vmcnt(0)")
    for k in range(4):
        a("ds_read_b128 v[%d:%d], v%d offset:%d" % (vO + 4 * k, vO + 4 * k + 3, vT + 2, L_OD + 16 * k))
    for i in range(16):
        if i % 4 == 0:
            a("s_waitcnt lgkmcnt(%d)" % (3 - i // 4))
        A = vA0 if i % 2 == 0 else vA1
        for r in range(4):
            a("v_and_b32 v%d, v%d, v%d" % (A + r, vO + i, vM + r))
        a("v_mfma_f32_16x16x32_bf16 v[%d:%d], v[%d:%d], v[%d:%d], %s" % (vAcc, vAcc + 3, A, A + 3, vW + 4 * i, vW + 4 * i + 3, "0" if i == 0 else "v[%d:%d]" % (vAcc, vAcc + 3)))
    for r in range(4):
        a("v_mov_b32 v%d, v%d" % (32 + r, vAcc + r))
    for r in range(4):
        a("v_permlane32_swap_b32 v%d, v%d" % (32 + r, 36 + r))
    for r in range(4):
        a("v_add_f32_dpp v%d, v%d, v%d row_shl:8 row_mask:0xf bank_mask:0x3" % (vAcc + r, 36 + r, vAcc + r))
    for r in range(4):
        a("v_min_u32 v%d, -2, v%d" % (vAcc + r, vAcc + r))
    a("s_mov_b64 exec, 0x00ff00ff")
    a("buffer_store_dwordx4 v[%d:%d], v%d, s[%d:%d], s%d offen sc1" % (vAcc, vAcc + 3, vT + 3, rWS, rWS + 3, sT2))
    a("s_mov_b64 exec, -1")
    stamp("pub")
    a("s_cmp_lg_u32 s%d, 31" % sH)
    a("s_cbranch_scc1 L_end")
    a("v_lshrrev_b32 v%d, 4, v%d" % (vT, vLane))
    a("v_and_b32 v%d, 15, v%d" % (vT + 1, vLane))
    a("v_mul_u32_u24 v%d, 2304, v%d" % (vT, vT))
    a("v_lshl_add_u32 v%d, v%d, 4, v%d" % (vT, vT + 1, vT))
    a("s_mul_i32 s%d, s%d, %d" % (sT2, sB, 32 * 2304))
    a("s_add_u32 s%d, s%d, s%d" % (sT2, sT2, sU))
    xfin_addr(vT + 4, vT + 5)
    a("v_lshlrev_b32 v%d, 2, v%d" % (vT + 5, vT + 4))
    a("v_add_u32 v%d, s%d, v%d" % (vT + 5, sU, vT + 5))
    a("ds_read_b32 v%d, v%d offset:%d" % (vT + 6, vT + 5, L_G))
    a("s_mov_b32 s%d, 0" % sCNT)
    a.label("L_poll")
    a("s_add_u32 s%d, s%d, 1" % (sCNT, sCNT))
    a("s_cmp_gt_u32 s%d, 0x100000" % sCNT)
    a("s_cbranch_scc1 L_end")
    a("s_mov_b32 s%d, s%d" % (sT3, sT2))
    for i in range(8):
        a("buffer_load_dwordx4 v[%d:%d], v%d, s[%d:%d], s%d offen sc1" % (64 + 4 * i, 67 + 4 * i, vT, rWS, rWS + 3, sT3))
        if i < 7: a("s_add_u32 s%d, s%d, %d" % (sT3, sT3, 4 * 2304))
    a("s_waitcnt vmcnt(0)")
    a("v_max3_u32 v%d, v64, v65, v66" % (vT + 2))
    a("v_max3_u32 v%d, v67, v68, v69" % (vT + 3))
    for k in range(70, 94, 4):
        a("v_max3_u32 v%d, v%d, v%d, v%d" % (vT + 2, vT + 2, k, k + 1))
        a("v_max3_u32 v%d, v%d, v%d, v%d" % (vT + 3, vT + 3, k + 2, k + 3))
    a("v_max3_u32 v%d, v%d, v94, v95" % (vT + 2, vT + 2))
    a("v_max_u32 v%d, v%d, v%d" % (vT + 2, vT + 2, vT + 3))
    a("v_cmp_eq_u32 vcc, -1, v%d" % (vT + 2))
    a("s_cbranch_vccz L_got")
    a("s_sleep %d" % poll_sleep)
    a("s_branch L_poll")
    a.label("L_got")
    for st in (16, 8, 4):
        for k in range(0, st, 2):
            a("v_pk_add_f32 v[%d:%d], v[%d:%d], v[%d:%d]" % (64 + k, 65 + k, 64 + k, 65 + k, 64 + k + st, 65 + k + st))
    a("v_permlane32_swap_b32 v64, v65")
    a("v_permlane32_swap_b32 v66, v67")
    a("v_add_f32 v64, v64, v65")
    a("v_add_f32 v66, v66, v67")
    a("v_permlane16_swap_b32 v64, v66")
    a("v_add_f32 v64, v64, v66")
    rbf(64, 64)
    a("s_waitcnt lgkmcnt(0)")
    a("v_mul_f32 v64, v64, v%d" % (vT + 6))
    rbf(64, 64)
    a("v_lshlrev_b32 v%d, 16, v%d" % (vXf, vXf))
    a("v_add_f32 v64, v64, v%d" % vXf)
    a("v_cvt_pk_bf16_f32 v64, v64, v64")
    a("s_mul_i32 s%d, s%d, 1152" % (sT0, sB))
    srd_off(rB, sOUT, sT0, 1160)
    a("v_lshlrev_b32 v%d, 1, v%d" % (vT + 4, vT + 4))
    a("s_lshl_b32 s%d, s%d, 7" % (sT3, sWAVE))
    a("buffer_store_short v64, v%d, s[%d:%d], s%d offen" % (vT + 4, rB, rB + 3, sT3))
    stamp("fin")
    a("s_endpgm")
    a.label("L_aux")
    tsn[0] = 0
    a("v_mov_b32 v24, -1"); a("v_mov_b32 v25, -1"); a("v_mov_b32 v26, -1"); a("v_mov_b32 v27, -1")
    a("s_mul_i32 s%d, s2, 2304" % sT2)
    a("buffer_store_dwordx4 v[24:27], v%d, s[%d:%d], s%d offen sc1" % (vOff16, rWS, rWS + 3, sT2))
    a("buffer_store_dwordx4 v[24:27], v%d, s[%d:%d], s%d offen offset:1024 sc1" % (vOff16, rWS, rWS + 3, sT2))
    a("s_mov_b64 exec, 0xffff")
    a("buffer_store_dwordx4 v[24:27], v%d, s[%d:%d], s%d offen offset:2048 sc1" % (vOff16, rWS, rWS + 3, sT2))
    a("s_mov_b64 exec, -1")
    make_masks()
    a("s_waitcnt vmcnt(0)")
    a("s_lshl_b32 s%d, s%d, 2" % (sT2, sB))
    a("v_mov_b32 v24, s%d" % sT2)
    a("v_mov_b32 v25, 1")
    a("s_mov_b64 exec, 1")
    a("global_atomic_add v24, v25, s[%d:%d] offset:64 sc1" % (sDBG, sDBG + 1))
    a("s_mov_b64 exec, -1")
    a("s_cmp_ge_u32 s2, 72")
    a("s_cbranch_scc1 L_aux_nomlp")
    vST = 64; vACC = 32; vTB = 24; vAF = 20; vGZ = 12; vZ = 4 + 156
    vZ = 160
    vXR = 24
    vLA = 0
    vWO = 3
    vt = 62
    a("s_mov_b32 s%d, s%d" % (rB, sX)); a("s_mov_b32 s%d, s%d" % (rB + 1, sX + 1))
    srd(rB, 0, 0, 8 * 1152)
    a("v_and_b32 v8, 7, v%d" % vLane)
    a("v_lshrrev_b32 v9, 3, v%d" % vLane)
    a("v_mul_u32_u24 v10, 1152, v8")
    a("v_lshl_add_u32 v10, v9, 4, v10")
    for blk in range(9):
        a("buffer_load_dwordx4 v[%d:%d], v10, s[%d:%d], 0 offen offset:%d" % (vXR + 4 * blk, vXR + 4 * blk + 3, rB, rB + 3, 128 * blk))
    a("s_lshl_b32 s%d, s2, 7" % sT0)
    srd_off(rKV, sW1, sT0, "s_sub_u32 s%%d, 0x%x, s%d" % (576 * 9216, sT0))
    a("v_mul_u32_u24 v%d, 0x%x, v9" % (vWO, 8 * 9216))
    a("v_lshl_add_u32 v%d, v8, 4, v%d" % (vWO, vWO))
    sSTR, sBST = sVlo, sVhi
    def blk_issue(q):
        for i in range(8):
            r = vST + 32 * q + 4 * i
            a("buffer_load_dwordx4 v[%d:%d], v%d, s[%d:%d], s%d offen %s" % (r, r + 3, vWO, rKV, rKV + 3, sOFF, pol))
            a("s_add_u32 s%d, s%d, s%d" % (sOFF, sOFF, sSTR if i < 7 else sBST))
    a("s_mov_b32 s%d, 9216" % sSTR)
    a("s_mov_b32 s%d, %d" % (sBST, 57 * 9216))
    a("s_mov_b32 s%d, 0" % sOFF)
    for q in range(3):
        blk_issue(q)
    a("s_barrier")
    a("s_mov_b32 s%d, 0x05040100" % sSEL0)
    a("s_mov_b32 s%d, 0x07060302" % sSEL1)
    a("s_waitcnt vmcnt(24)")
    for blk in range(9):
        a("ds_write_b128 v%d, v[%d:%d] offset:%d" % (vOff16, vXR + 4 * blk, vXR + 4 * blk + 3, L_XA + 1024 * blk))
    a("v_mov_b32 v9, 0x3f803f80")
    for k in range(36):
        a("v_dot2_f32_bf16 v8, v%d, v9, %s" % (vXR + k, "0" if k == 0 else "v8"))
    def red8(v, t):
        a("v_add_f32_dpp v%d, v%d, v%d row_ror:8 row_mask:0xf bank_mask:0xf" % (v, v, v))
        a("v_mov_b32 v%d, v%d" % (t, v))
        a("v_permlane16_swap_b32 v%d, v%d" % (v, t))
        a("v_add_f32 v%d, v%d, v%d" % (v, v, t))
        a("v_mov_b32 v%d, v%d" % (t, v))
        a("v_permlane32_swap_b32 v%d, v%d" % (v, t))
        a("v_add_f32 v%d, v%d, v%d" % (v, v, t))
    red8(8, 9)
    a("v_mul_f32 v8, 0x%x, v8" % INV576)
    a("v_mov_b32 v9, 0")
    a("v_mov_b32 v%d, v%d" % (vLA, vOff16))
    a("s_mov_b32 s%d, 0" % sCNT)
    a.label("L_var")
    a("ds_read_b128 v[24:27], v%d offset:%d" % (vLA, L_XA))
    a("v_add_u32 v%d, 1024, v%d" % (vLA, vLA))
    a("s_waitcnt lgkmcnt(0)")
    for k in range(4):
        a("v_lshlrev_b32 v28, 16, v%d" % (24 + k))
        a("v_and_b32 v29, 0xffff0000, v%d" % (24 + k))
        a("v_sub_f32 v28, v28, v8")
        a("v_sub_f32 v29, v29, v8")
        a("v_fmac_f32 v9, v28, v28")
        a("v_fmac_f32 v9, v29, v29")
    a("s_add_u32 s%d, s%d, 1" % (sCNT, sCNT))
    a("s_cmp_lt_u32 s%d, 9" % sCNT)
    a("s_cbranch_scc1 L_var")
    red8(9, 10)
    a("v_mul_f32 v9, 0x%x, v9" % INV576)
    ln_scalars(8, 9, 10, 11, 30)
    a("v_mov_b32 v%d, v%d" % (vLA, vOff16))
    a("s_mov_b32 s%d, 0" % sCNT)
    a.label("L_nrm")
    a("ds_read_b128 v[24:27], v%d offset:%d" % (vLA, L_XA))
    a("s_waitcnt lgkmcnt(0)")
    for k in range(4):
        a("v_lshlrev_b32 v28, 16, v%d" % (24 + k))
        a("v_and_b32 v29, 0xffff0000, v%d" % (24 + k))
        a("v_sub_f32 v28, v28, v10")
        a("v_sub_f32 v29, v29, v10")
        a("v_cvt_pk_bf16_f32 v29, v28, v29")
        a("v_lshlrev_b32 v28, 16, v29")
        a("v_and_b32 v29, 0xffff0000, v29")
        div1(31, 28, 11, 30, 8)
        div1(28, 29, 11, 30, 8)
        a("v_cvt_pk_bf16_f32 v%d, v31, v28" % (24 + k))
    a("ds_write_b128 v%d, v[24:27] offset:%d" % (vLA, L_XA))
    a("v_add_u32 v%d, 1024, v%d" % (vLA, vLA))
    a("s_add_u32 s%d, s%d, 1" % (sCNT, sCNT))
    a("s_cmp_lt_u32 s%d, 9" % sCNT)
    a("s_cbranch_scc1 L_nrm")
    stamp("aux_ln")
    def blk_mfma(q, A, first_zero):
        for j in range(8):
            B = vTB + 4 * (j % 2)
            for r in range(4):
                s0 = vST + 32 * q + 4 * (2 * r + 1) + (j >> 1)
                s1 = vST + 32 * q + 4 * (2 * r) + (j >> 1)
                a("v_perm_b32 v%d, v%d, v%d, s%d" % (B + r, s0, s1, sSEL1 if j & 1 else sSEL0))
            D = vACC + 4 * j
            a("v_mfma_f32_16x16x32_bf16 v[%d:%d], v[%d:%d], v[%d:%d], %s" % (D, D + 3, A, A + 3, B, B + 3, "0" if first_zero else "v[%d:%d]" % (D, D + 3)))
    def fixup():
        for j in range(8):
            D = vACC + 4 * j
            a("v_permlane32_swap_b32 v%d, v%d" % (D, D + 1))
            a("v_permlane32_swap_b32 v%d, v%d" % (D + 2, D + 3))
        for j in range(8):
            D = vACC + 4 * j
            a("v_add_f32_dpp v%d, v%d, v%d row_shl:8 row_mask:0xf bank_mask:0x3" % (vZ + j, D + 1, D))
            a("v_add_f32_dpp v%d, v%d, v%d row_shr:8 row_mask:0xf bank_mask:0xc" % (vZ + j, D + 2, D + 3))
    sPASS = sCONS
    a("s_mov_b32 s%d, 0" % sPASS)
    a.label("L_pass")
    for k in range(32):
        a("v_mov_b32 v%d, 0" % (vACC + k))
    a("v_mov_b32 v%d, v%d" % (vLA, vOff16))
    a("s_mov_b32 s%d, 0" % sCNT)
    a.label("L_s1")
    for q in range(3):
        a("ds_read_b128 v[%d:%d], v%d offset:%d" % (vAF, vAF + 3, vLA, L_XA + 1024 * q))
        a("s_waitcnt vmcnt(16) lgkmcnt(0)")
        blk_mfma(q, vAF, False)
        blk_issue(q)
    a("v_add_u32 v%d, 3072, v%d" % (vLA, vLA))
    a("s_add_u32 s%d, s%d, 1" % (sCNT, sCNT))
    a("s_cmp_lt_u32 s%d, 3" % sCNT)
    a("s_cbranch_scc1 L_s1")
    a("s_waitcnt vmcnt(0)")
    a("s_cmp_eq_u32 s%d, 1" % sPASS)
    a("s_cbranch_scc1 L_s1done")
    a("s_lshl_b32 s%d, s2, 7" % sT0)
    srd_off(rKV, sW3, sT0, "s_sub_u32 s%%d, 0x%x, s%d" % (576 * 9216, sT0))
    a("s_mov_b32 s%d, 0" % sOFF)
    for q in range(3):
        blk_issue(q)
    fixup()
    for j in range(8):
        rbf(vGZ + j, vZ + j)
    a("s_mov_b32 s%d, 1" % sPASS)
    a("s_branch L_pass")
    a.label("L_s1done")
    a("s_mul_i32 s%d, s2, %d" % (sT0, 64 * 1152))
    srd_off(rKV, sW2, sT0, 64 * 1152)
    a("v_and_b32 v8, 7, v%d" % vLane)
    a("v_lshrrev_b32 v9, 3, v%d" % vLane)
    a("v_mul_u32_u24 v%d, %d, v9" % (vWO, 8 * 1152))
    a("v_lshl_add_u32 v%d, v8, 4, v%d" % (vWO, vWO))
    a("s_mov_b32 s%d, 1152" % sSTR)
    a("s_mov_b32 s%d, %d" % (sBST, (128 - 7 * 1152) & 0xffffffff))
    a("s_mov_b32 s%d, 0" % sOFF)
    for q in range(3):
        blk_issue(q)
    fixup()
    for j in range(8):
        rbf(vZ + j, vZ + j)
        silu(10, vGZ + j, 11)
        rbf(10, 10)
        a("v_mul_f32 v%d, v10, v%d" % (vZ + j, vZ + j))
    for r in range(4):
        a("v_cvt_pk_bf16_f32 v%d, v%d, v%d" % (vGZ + r, vZ + 2 * r, vZ + 2 * r + 1))
    a("v_and_b32 v10, 6, v8")
    a("v_lshl_add_u32 v10, v10, 2, v9")
    a("v_and_b32 v11, 1, v8")
    a("v_lshl_add_u32 v10, v11, 5, v10")
    a("v_lshlrev_b32 v10, 2, v10")
    for r in range(4):
        a("ds_bpermute_b32 v%d, v10, v%d" % (vAF + r, vGZ + r))
    a("v_bfe_u32 v10, v%d, 3, 2" % vLane)
    a("v_lshlrev_b32 v10, 1, v10")
    a("v_lshrrev_b32 v11, 5, v%d" % vLane)
    a("v_add_u32 v10, v10, v11")
    a("v_mul_u32_u24 v10, 0x%x, v10" % (72 * 2304))
    a("v_lshl_add_u32 v%d, v8, 5, v10" % vLA)
    a("s_mul_i32 s%d, s2, 2304" % sT2)
    a("s_add_u32 s%d, s%d, 0x%x" % (sT2, sT2, WS_MP))
    a("s_mov_b32 s%d, 0" % sCNT)
    a("s_waitcnt lgkmcnt(0)")
    a.label("L_s2")
    for q in range(3):
        a("s_waitcnt vmcnt(0)" if False else "s_waitcnt vmcnt(%d)" % 16)
        blk_mfma(q, vAF, True)
        a("s_cmp_eq_u32 s%d, 2" % sCNT)
        a("s_cbranch_scc1 L_s2last%d" % q)
        blk_issue(q)
        a("s_branch L_s2go%d" % q)
        a.label("L_s2last%d" % q)
        a("s_waitcnt vmcnt(0)")
        a.label("L_s2go%d" % q)
        fixup()
        a("buffer_store_dwordx4 v[%d:%d], v%d, s[%d:%d], s%d offen offset:%d sc1" % (vZ, vZ + 3, vLA, rWS, rWS + 3, sT2, 256 * q))
        a("buffer_store_dwordx4 v[%d:%d], v%d, s[%d:%d], s%d offen offset:%d sc1" % (vZ + 4, vZ + 7, vLA, rWS, rWS + 3, sT2, 256 * q + 16))
    a("s_add_u32 s%d, s%d, 768" % (sT2, sT2))
    a("s_add_u32 s%d, s%d, 1" % (sCNT, sCNT))
    a("s_cmp_lt_u32 s%d, 3" % sCNT)
    a("s_cbranch_scc1 L_s2")
    a("s_waitcnt vmcnt(0)")
    a("v_mov_b32 v24, 0")
    a("v_mov_b32 v25, 1")
    a("s_mov_b64 exec, 1")
    a("global_atomic_add v24, v25, s[%d:%d] sc1" % (sDBG, sDBG + 1))
    a("s_mov_b64 exec, -1")
    stamp("aux_mlp")
    a("s_branch L_aux2")
    a.label("L_aux_nomlp")
    a("s_barrier")
    a.label("L_aux2")
    wo_loads()
    a("s_cmp_lg_u32 s%d, 31" % sH)
    a("s_cbranch_scc1 L_aux3")
    a("s_lshl_b32 s%d, s%d, 2" % (sT2, sB))
    a("v_mov_b32 v24, 0")
    a("v_mov_b32 v25, s%d" % sT2)
    a("s_mov_b32 s%d, 0" % sCNT)
    a.label("L_wait1")
    a("s_add_u32 s%d, s%d, 1" % (sCNT, sCNT))
    a("s_cmp_gt_u32 s%d, 0x80000" % sCNT)
    a("s_cbranch_scc1 L_end")
    a("global_load_dword v26, v24, s[%d:%d] sc1" % (sDBG, sDBG + 1))
    a("global_load_dword v27, v25, s[%d:%d] offset:64 sc1" % (sDBG, sDBG + 1))
    a("s_waitcnt vmcnt(0)")
    a("v_readfirstlane_b32 s%d, v26" % sT2)
    a("v_readfirstlane_b32 s%d, v27" % sT3)
    a("s_cmp_eq_u32 s%d, 72" % sT2)
    a("s_cselect_b32 s%d, s%d, 0" % (sT3, sT3))
    a("s_cmp_eq_u32 s%d, 32" % sT3)
    a("s_cbranch_scc1 L_red")
    a("s_sleep 32")
    a("s_branch L_wait1")
    a.label("L_red")
    a("v_mul_u32_u24 v24, 12, v%d" % vLane)
    a("s_mul_i32 s%d, s%d, %d" % (sT2, sB, 72 * 2304))
    a("s_add_u32 s%d, s%d, 0x%x" % (sT2, sT2, WS_MP))
    for k in range(3):
        for e in range(3):
            a("v_mov_b32 v%d, 0" % (8 + 4 * k + e))
    a("s_mov_b32 s%d, 0" % sCNT)
    a.label("L_redl")
    NS = 8
    for s_ in range(NS):
        for k in range(3):
            r = 28 + (s_ * 3 + k) * 4 if (28 + (s_ * 3 + k) * 4) + 3 < 60 else None
        pass
    regs = [64 + 4 * i for i in range(8)] + [28 + 4 * i for i in range(4)]
    NS = 4
    for s_ in range(NS):
        for k in range(3):
            r = regs[s_ * 3 + k]
            a("buffer_load_dwordx3 v[%d:%d], v24, s[%d:%d], s%d offen offset:%d sc1" % (r, r + 2, rWS, rWS + 3, sT2, 768 * k))
        a("s_add_u32 s%d, s%d, 2304" % (sT2, sT2))
    for s_ in range(NS):
        a("s_waitcnt vmcnt(%d)" % (3 * (NS - 1 - s_)))
        for k in range(3):
            r = regs[s_ * 3 + k]
            for e in range(3):
                a("v_add_f32 v%d, v%d, v%d" % (8 + 4 * k + e, 8 + 4 * k + e, r + e))
    a("s_add_u32 s%d, s%d, 1" % (sCNT, sCNT))
    a("s_cmp_lt_u32 s%d, %d" % (sCNT, 72 // NS))
    a("s_cbranch_scc1 L_redl")
    for k in range(3):
        for e in range(3):
            v = 8 + 4 * k + e
            rbf(v, v)
            silu(25, v, 26)
            rbf(v, 25)
            a("ds_write_b32 v24, v%d offset:%d" % (v, L_G + 768 * k + 4 * e))
    stamp("aux_red")
    a.label("L_aux3")
    a("s_barrier")
    a("s_branch L_tail")
    a.label("L_end")
    a("s_endpgm")
    body = a.finalize()
    out = HEADER
    out += "; @launch grid=(256,1,1) block=(576,1,1) lds=%d\n" % L_END
    out += '.amdgcn_target "amdgcn-amd-amdhsa--gfx950"\n.text\n.globl %s\n.p2align 8\n.type %s,@function\n' % (K, K)
    out += body
    out += '.section .rodata,"a"\n.p2align 6\n.amdhsa_kernel %s\n' % K
    out += "  .amdhsa_next_free_vgpr 168\n  .amdhsa_next_free_sgpr 80\n  .amdhsa_accum_offset 168\n"
    out += "  .amdhsa_group_segment_fixed_size 0\n  .amdhsa_kernarg_size 96\n  .amdhsa_user_sgpr_count 2\n"
    out += "  .amdhsa_user_sgpr_kernarg_segment_ptr 1\n  .amdhsa_system_sgpr_workgroup_id_x 1\n.end_amdhsa_kernel\n"
    return out

if __name__ == "__main__":
    if len(sys.argv) > 1 and sys.argv[1].startswith("["):
        names = []
        for c in eval(sys.argv[1]):
            n = "k_" + "_".join("%s%s" % (k, str(v).replace(" ", "")) for k, v in c.items()) + ".s"
            open(n, "w").write(gen(**c)); names.append(n)
        print(" ".join(names))
    else:
        kw = eval("dict(%s)" % (sys.argv[2] if len(sys.argv) > 2 else ""))
        open(sys.argv[1] if len(sys.argv) > 1 else "k.s", "w").write(gen(**kw))
```

```python
import sys
from asmlib import Asm
NAME = "recurrent_scan__mha_block_cached__glu_gated_swiglu__decode"
HEADER = open("cdna_kernels/%s.s.ref" % NAME).read().split("; Override launch")[0]

LOG2E = 0x3fb8aa3b
SCALE = 0x3db504f3
INV576 = 0x3ae38e39
EPS = 0x3727c5ac

L_QP = 0
L_OP = 2048
L_ST = 6144
L_CNT = 6208
L_G = 6272
L_OD = 8576
L_XD = 13184
L_ZX = 22400
L_P = L_ZX + 3 * 2048
PG = 528
L_QF = L_P + 8 * 4 * PG
L_END = L_QF + 256

WS_H = 1 << 20
WS_MO = (1 << 20) + (512 << 10)
WS_RT = 2 << 20
WS_TS = 4 << 20

def gen(LA=8, PLA=4, VT=10, pol="nt", wqpol="", wopol="", mpol="", ts=False, poll_sleep=1, nomlp=False,
        PR=37, early=(1, 2, 3, 8, 14, 20, 26, 32, 35, 36), prio=3, TW=(6, 6), TS=2, KW=(4, 4), VW=(3, 3), EW=6, EN=0, MW=3,
        ad=None, CW=None, nowo=False, nowq=False, mno='', hsleep=127, JROT=0, HD=0, V3=(2, 3, 6, 4200, 430, 200), VB=None, KB=None, PW2=None, PN=99, WQ0=8, RC=None, RT=None, WS0=44, WS1=124, KX=1, PH=None, wprio=0, NC=8, CC=(2, 3, 4, -40, 40, 33, 480, 435, 150, 3), NSET=1, stpol='sc1', PS=4, tprio=None, P0=0, PROBE=True, SEL=True, hs2=1, SMI=True, SW=4, NC2=0, WOPF=0, PF=0, pfpol='', PFW=1):
    R = 16
    a = Asm()
    sX, sK, sV, sWQ, sWO, sW1, sW3, sW2, sOUT, sDBG, sWS = 4, 6, 8, 10, 12, 16, 18, 20, 22, 24, 26
    sWAVE = 3
    sB, sH, sBH = 28, 29, 30
    sT0, sT1, sT2, sT3 = 31, 32, 33, 34
    sCNT = 35
    rKV, rA, rB, rWS = 36, 40, 44, 48
    sVlo, sVhi = 52, 53
    sOFF = 54
    sWOFF = 55
    sM1, sM2 = 56, 58
    sSEL0, sSEL1 = 60, 61
    sTS = 62
    sTSB = 64
    sSLOT = 65
    sU, sUN, sWK = 66, 67, 68
    sXG, sJ = 69, 70
    sDL = 71
    sMS, sREF, sISR, sEO, sST0 = 14, 96, 15, 71, 17
    if RC or CC: V3 = None
    sRB, sMODE = 18, 19
    vLane, vOff16, vXf = 1, 2, 3
    vM = 4; vQ = 8; vS = 12; vAcc = 20; vA0 = 24; vA1 = 28; vP0 = 12; vP1 = 16
    vT = 24
    vPA, vPR, vPW, vWOA = 36, 37, 38, 39
    vRing = 40
    vW = 104
    stampnames = {}
    def stamp(tag):
        if not ts: return
        if tag not in stampnames: stampnames[tag] = len(stampnames)
        k = stampnames[tag]
        assert k < 24
        a("s_memrealtime s[%d:%d]" % (sTS, sTS + 1))
        a("s_waitcnt lgkmcnt(0)")
        a("s_mov_b32 s%d, s%d" % (72 + k, sTS))
    def stamp_flush():
        if not ts: return
        a("v_mov_b32 v23, s%d" % sTSB)
        a("s_mov_b64 exec, 1")
        for k in range(24):
            a("v_mov_b32 v22, s%d" % (72 + k))
            a("buffer_store_dword v22, v23, s[%d:%d], 0 offen offset:%d" % (rWS, rWS + 3, 4 * k))
        a("s_mov_b64 exec, -1")
    def srd_tail(r, nrec):
        if isinstance(nrec, int): a("s_mov_b32 s%d, 0x%x" % (r + 2, nrec))
        else: a(nrec % (r + 2))
        a("s_mov_b32 s%d, 0x20000" % (r + 3))
    def srd(r, base, nrec):
        a("s_mov_b32 s%d, s%d" % (r, base)); a("s_mov_b32 s%d, s%d" % (r + 1, base + 1))
        srd_tail(r, nrec)
    def srd_off(r, base, soff, nrec):
        a("s_add_u32 s%d, s%d, s%d" % (r, base, soff))
        a("s_addc_u32 s%d, s%d, 0" % (r + 1, base + 1))
        srd_tail(r, nrec)
    def wave_reduce(op, v, sdst):
        for r in (8, 4, 2, 1):
            a("%s_dpp v%d, v%d, v%d row_ror:%d row_mask:0xf bank_mask:0xf" % (op, v, v, v, r))
        a("%s_dpp v%d, v%d, v%d row_bcast:15 row_mask:0xa bank_mask:0xf" % (op, v, v, v))
        a("%s_dpp v%d, v%d, v%d row_bcast:31 row_mask:0xc bank_mask:0xf" % (op, v, v, v))
        a("v_readlane_b32 s%d, v%d, 63" % (sdst, v))
    def rbf(d, s):
        a("v_cvt_pk_bf16_f32 v%d, v%d, v%d" % (d, s, s))
        a("v_and_b32 v%d, 0xffff0000, v%d" % (d, d))
    def ln_scalars(vmean, vvar, vmb, vsd, vrs):
        rbf(vmb, vmean)
        rbf(vsd, vvar)
        a("v_add_f32 v%d, 0x%x, v%d" % (vsd, EPS, vsd))
        rbf(vsd, vsd)
        a("v_sqrt_f32 v%d, v%d" % (vsd, vsd))
        rbf(vsd, vsd)
        a("v_rcp_f32 v%d, v%d" % (vrs, vsd))
    def div1(d, n, vsd, vrs, t):
        a("v_mul_f32 v%d, v%d, v%d" % (d, n, vrs))
        a("v_fma_f32 v%d, -v%d, v%d, v%d" % (t, d, vsd, n))
        a("v_fma_f32 v%d, v%d, v%d, v%d" % (d, t, vrs, d))
    def silu(d, x, t):
        a("v_mul_f32 v%d, 0x%x, v%d" % (t, LOG2E | 0x80000000, x))
        a("v_exp_f32 v%d, v%d" % (t, t))
        a("v_add_f32 v%d, 1.0, v%d" % (t, t))
        a("v_rcp_f32 v%d, v%d" % (t, t))
        a("v_mul_f32 v%d, v%d, v%d" % (d, x, t))
    def mfma(D, A, B, zero):
        a("v_mfma_f32_16x16x32_bf16 v[%d:%d], v[%d:%d], v[%d:%d], %s" % (D, D + 3, A, A + 3, B, B + 3, "0" if zero else "v[%d:%d]" % (D, D + 3)))
    def make_masks(t0, t1):
        a("v_and_b32 v%d, 1, v%d" % (t0, vLane))
        a("v_lshlrev_b32 v%d, 4, v%d" % (t0, t0))
        a("v_mov_b32 v%d, 0xffff" % t1)
        a("v_lshlrev_b32 v%d, v%d, v%d" % (t0, t0, t1))
        a("v_bfe_u32 v%d, v%d, 1, 2" % (t1, vLane))
        for r in range(4):
            a("v_cmp_eq_u32 vcc, %d, v%d" % (r, t1))
            a("v_cndmask_b32 v%d, 0, v%d, vcc" % (vM + r, t0))
    def xfin_addr(d, t):
        a("v_lshrrev_b32 v%d, 4, v%d" % (t, vLane))
        a("v_bfrev_b32 v%d, v%d" % (t, t))
        a("v_lshrrev_b32 v%d, 30, v%d" % (t, t))
        a("v_and_b32 v%d, 15, v%d" % (d, vLane))
        a("v_lshl_add_u32 v%d, v%d, 2, v%d" % (d, d, t))
    def part_addr(d, t, sw):
        a("v_and_b32 v%d, 15, v%d" % (d, vLane))
        a("v_bfe_u32 v%d, v%d, 4, 1" % (t, vLane))
        a("v_lshlrev_b32 v%d, 5, v%d" % (d, d))
        a("v_lshl_add_u32 v%d, v%d, 4, v%d" % (d, t, d))
        a("s_lshl_b32 s%d, s%d, 9" % (sT2, sw))
        a("v_add_u32 v%d, s%d, v%d" % (d, sT2, d))
    def wo_setup(t):
        a("s_mul_i32 s%d, s%d, 0x%x" % (sT2, sH, 128 * 1152))
        a("s_lshl_b32 s%d, s%d, 7" % (sT3, sUN))
        a("s_add_u32 s%d, s%d, s%d" % (sT2, sT2, sT3))
        srd_off(rB, sWO, sT2, "s_sub_u32 s%%d, 0x%x, s%d" % (4096 * 1152, sT2))
        a("v_lshrrev_b32 v%d, 3, v%d" % (vWOA, vLane))
        a("v_and_b32 v%d, 7, v%d" % (t, vLane))
        a("v_mul_u32_u24 v%d, 0x%x, v%d" % (vWOA, 8 * 1152, vWOA))
        a("v_lshl_add_u32 v%d, v%d, 4, v%d" % (vWOA, t, vWOA))
        a("s_mov_b32 s%d, 0" % sWOFF)
    def wo_load(i):
        if nowo: a("s_mov_b32 s%d, 0x7fffffff" % sWOFF)
        a("buffer_load_dwordx4 v[%d:%d], v%d, s[%d:%d], s%d offen offset:%d %s" % (vW + 4 * i, vW + 4 * i + 3, vWOA, rB, rB + 3, sWOFF, (i % 2) * 1152, wopol))
        if i % 2 == 1 and i < 15: a("s_add_u32 s%d, s%d, %d" % (sWOFF, sWOFF, 2304 if i != 7 else 58 * 1152))
    def xf_load(t0, t1):
        xfin_addr(t0, t1)
        a("s_lshl_b32 s%d, s%d, 7" % (sT3, sUN))
        a("v_lshlrev_b32 v%d, 1, v%d" % (t0, t0))
        a("buffer_load_ushort v%d, v%d, s[%d:%d], s%d offen nt" % (vXf, t0, rA, rA + 3, sT3))
    def lds_wait(off, n, tag, va, vb, sleep=1):
        a("v_mov_b32 v%d, 0" % va)
        a.label("L_lw" + tag)
        a("ds_read_b32 v%d, v%d offset:%d" % (vb, va, off))
        a("s_waitcnt lgkmcnt(0)")
        a("v_readfirstlane_b32 s%d, v%d" % (sT2, vb))
        a("s_cmp_ge_u32 s%d, %d" % (sT2, n))
        a("s_cbranch_scc1 L_lg" + tag)
        a("s_sleep %d" % sleep)
        a("s_branch L_lw" + tag)
        a.label("L_lg" + tag)
    def lds_sig(off, va, vb):
        a("v_mov_b32 v%d, 0" % va); a("v_mov_b32 v%d, 1" % vb)
        a("s_mov_b64 exec, 1")
        a("ds_add_u32 v%d, v%d offset:%d" % (va, vb, off))
        a("s_mov_b64 exec, -1")
    def tag16(d, vn, bit):
        a("v_bfe_u32 v%d, v%d, %d, 1" % (d, vLane, bit))
        a("v_lshlrev_b32 v%d, 4, v%d" % (d, d))
        a("v_bfe_u32 v%d, v%d, v%d, 16" % (d, vn, d))
    def nibs(d, t16):
        for k in range(3, -1, -1):
            a("v_bfe_u32 v%d, v%d, %d, 4" % (d + k, t16, 4 * k))
    sPUB = 16
    def wo_transpose(hook=None):
        a("s_mov_b32 s%d, 0x05040100" % sSEL0)
        a("s_mov_b32 s%d, 0x07060302" % sSEL1)
        TQ = [88, 92, 96, 100, 8, 20, 24, 32]
        for t, dst in ((0, TQ), (1, [vW + 4 * j for j in range(8)])):
            if hook: hook()
            for j in range(8):
                for r in range(4):
                    s0 = vW + 32 * t + 4 * (2 * r + 1) + (j >> 1)
                    s1 = vW + 32 * t + 4 * (2 * r) + (j >> 1)
                    a("v_perm_b32 v%d, v%d, v%d, s%d" % (dst[j] + r, s0, s1, sSEL1 if j & 1 else sSEL0))
        for j in range(8):
            for r in range(4):
                a("v_mov_b32 v%d, v%d" % (vW + 32 + 4 * j + r, TQ[j] + r))
    def tail_prep(tag):
        lds_wait(L_CNT + 16, 1, tag, 38, 39, 4)
        tag16(0, 39, 4)
        a("v_lshlrev_b32 v38, 3, v%d" % vLane)
        a("v_and_b32 v3, 7, v%d" % vLane)
        a("v_lshrrev_b32 v39, 4, v%d" % vLane)
        a("v_lshlrev_b32 v3, 5, v3")
        a("v_lshl_add_u32 v3, v39, 4, v3")
        a("v_lshrrev_b32 v39, 3, v%d" % vLane)
        a("v_lshlrev_b32 v39, 4, v39")
        a("s_mul_i32 s%d, s%d, 2304" % (sPUB, sSLOT))
        a("s_lshl_b32 s%d, s%d, 8" % (sU, sUN))
        a("s_add_u32 s%d, s%d, s%d" % (sPUB, sPUB, sU))
        a("s_mov_b32 s%d, 0xffff0000" % sM1); a("s_mov_b32 s%d, 0xffff0000" % (sM1 + 1))
    def is_consumer():
        a("s_lshl2_add_u32 s%d, s%d, 3" % (sT2, sB))
        a("s_cmp_lg_u32 s%d, s%d" % (sH, sT2))
    def wo_prefetch():
        a("s_mul_i32 s%d, s%d, 0x%x" % (sT2, sH, 128 * 1152))
        a("s_mul_i32 s%d, s%d, 18432" % (sT3, sB))
        a("s_add_u32 s%d, s%d, s%d" % (sT2, sT2, sT3))
        srd_off(rB, sWO, sT2, 18432)
        a("v_lshlrev_b32 v71, 7, v%d" % vLane)
        for k in range(3):
            a("s_mov_b32 s%d, %d" % (sT3, 8192 * k))
            a("buffer_load_dword v70, v71, s[%d:%d], s%d offen %s" % (rB, rB + 3, sT3, pfpol))
    def common_setup():
        srd(rWS, sWS, 8 << 20)
        if ts:
            a("s_mul_i32 s%d, s2, 12" % sTSB); a("s_add_u32 s%d, s%d, s%d" % (sTSB, sTSB, sWAVE))
            a("s_lshl_b32 s%d, s%d, 7" % (sTSB, sTSB)); a("s_add_u32 s%d, s%d, 0x%x" % (sTSB, sTSB, WS_TS))

    K = NAME + "_kernel"
    a.label(K)
    a("s_cmp_ge_u32 s2, 256")
    a("s_cbranch_scc1 L_end")
    if ts:
        for k in range(24): a("s_mov_b32 s%d, 0" % (72 + k))
    stamp("start")
    a("s_load_dwordx16 s[4:19], s[0:1], 0")
    a("s_load_dwordx8 s[20:27], s[0:1], 64")
    if ad or V3 or RC or CC: a("s_memrealtime s[%d:%d]" % (sTS, sTS + 1))
    a("v_lshrrev_b32 v2, 6, v0")
    a("v_and_b32 v%d, 63, v0" % vLane)
    a("v_readfirstlane_b32 s%d, v2" % sWAVE)
    a("v_lshlrev_b32 v%d, 4, v%d" % (vOff16, vLane))
    a("s_and_b32 s%d, s2, 7" % sXG)
    a("s_lshr_b32 s%d, s2, 3" % sJ)
    a("s_and_b32 s%d, s%d, 3" % (sH, sJ))
    a("s_lshl2_add_u32 s%d, s%d, s%d" % (sH, sXG, sH))
    a("s_lshr_b32 s%d, s%d, 2" % (sB, sJ))
    a("s_lshl_b32 s%d, s%d, 5" % (sSLOT, sB))
    a("s_add_u32 s%d, s%d, s%d" % (sSLOT, sSLOT, sH))
    a("s_lshl_b32 s%d, s%d, 20" % (sBH, sSLOT))
    a("s_lshl_b32 s%d, s%d, 12" % (sOFF, sWAVE))
    a("s_mul_i32 s%d, s%d, 1152" % (sT0, sB))
    a("s_lshl_b32 s%d, s%d, 8" % (sT1, sH))
    a("s_min_u32 s%d, s%d, 8" % (sUN, sWAVE))
    a("s_cmp_ge_u32 s%d, 8" % sWAVE)
    a("s_cbranch_scc1 L_w")
    a("s_waitcnt lgkmcnt(0)")
    srd_off(rKV, sK, sBH, 1 << 20)
    if prio: a("s_setprio %d" % prio)
    cur = {"pol": pol}
    def issue(n, switch, reg=None):
        j = n % 4; r = vRing + 4 * (n % R) if reg is None else reg
        a("buffer_load_dwordx4 v[%d:%d], v%d, s[%d:%d], s%d offen offset:%d %s" % (r, r + 3, vOff16, rKV, rKV + 3, sOFF, j * 1024, cur['pol']))
        if j == 3:
            a("s_add_u32 s%d, s%d, 0x8000" % (sOFF, sOFF))
            if switch:
                a("s_cmp_ge_u32 s%d, 0x100000" % sOFF)
                a("s_cselect_b32 s%d, s%d, s%d" % (rKV, sVlo, rKV))
                a("s_cselect_b32 s%d, s%d, s%d" % (rKV + 1, sVhi, rKV + 1))
                a("s_and_b32 s%d, s%d, 0xfffff" % (sOFF, sOFF))
    lab = [0]
    def wait2(small, big):
        if small == big:
            a("s_waitcnt vmcnt(%d)" % small); return
        lab[0] += 1
        a("s_cbranch_vccnz L_wd%d" % lab[0])
        a("s_waitcnt vmcnt(%d)" % small)
        a.label("L_wd%d" % lab[0])
        a("s_waitcnt vmcnt(%d)" % big)
    extra = [12, 20, 4, 36]
    def preg(m):
        if PR == 32: return vRing + 4 * m
        if m == 0: return 16
        if m <= 16: return vRing + 4 * ((PR + m - 1) % 16)
        if m <= 32: return vW + 4 * (m - 17)
        return extra[m - 33]
    assert PR == 32 or 33 <= PR <= 37
    for n in range(PLA):
        issue(n, False, preg(n))
    a("s_barrier")
    stamp("issued")
    common_setup()
    if V3: a("s_add_u32 s%d, s%d, %d" % (sDL, sTS, V3[3]))
    if CC:
        a("s_mov_b32 s%d, s%d" % (sST0, sTS))
        a("s_cmp_eq_u32 s2, %d" % CC[5])
        a("s_cselect_b32 s%d, 1, 0" % sISR)
        a("s_mov_b32 s%d, 0" % sRB)
    if RC:
        a("s_mov_b32 s%d, s%d" % (sST0, sTS))
        a("s_mov_b32 s%d, 0" % sISR)
        for r_, wg in enumerate(RC[5]):
            a("s_cmp_eq_u32 s2, %d" % wg)
            a("s_cselect_b32 s%d, %d, s%d" % (sISR, r_ + 1, sISR))
    srd_off(rA, sX, sT0, 1160)
    a("s_add_u32 s%d, s%d, s%d" % (sVlo, sV, sBH)); a("s_addc_u32 s%d, s%d, 0" % (sVhi, sV + 1))
    a("s_mov_b32 s%d, 0xaaaaaaaa" % sM1); a("s_mov_b32 s%d, 0xaaaaaaaa" % (sM1 + 1))
    a("s_mov_b32 s%d, 0xcccccccc" % sM2); a("s_mov_b32 s%d, 0xcccccccc" % (sM2 + 1))
    a("v_and_b32 v0, 15, v%d" % vLane)
    a("v_lshlrev_b32 v0, 4, v0")
    if PH:
        a("s_cmp_lt_u32 s%d, %d" % (sWAVE, PH))
        a("s_cselect_b64 vcc, -1, 0")
    for n in range(PLA, PR):
        w = PLA if (PW2 is None or n < PN) else PW2
        if PH: wait2(w - 2, w - 1)
        else: a("s_waitcnt vmcnt(%d)" % (w - 1))
        issue(n, False, preg(n))
    stamp("preB1")
    if PF:
        a("v_lshlrev_b32 v35, 7, v%d" % vLane)
        a("v_mov_b32 v24, 0")
        a("s_mov_b32 s%d, s%d" % (sT0, sOFF))
        for k in range(PF):
            a("ds_read_b32 v25, v24 offset:%d" % (L_CNT + 20))
            a("s_waitcnt vmcnt(%d) lgkmcnt(0)" % (PFW - 1))
            a("v_readfirstlane_b32 s%d, v25" % sT2)
            a("s_cmp_ge_u32 s%d, 1" % sT2)
            a("s_cbranch_scc1 L_lgq")
            a("s_mov_b32 exec_hi, 0")
            a("buffer_load_dword v34, v35, s[%d:%d], s%d offen %s" % (rKV, rKV + 3, sT0, pfpol))
            a("s_mov_b32 exec_hi, -1")
            a("s_add_u32 s%d, s%d, 0x8000" % (sT0, sT0))
    lds_wait(L_CNT + 20, 1, "q", 24, 25)
    a("ds_read_b128 v[%d:%d], v0 offset:%d" % (vQ, vQ + 3, L_QF))
    a("s_waitcnt lgkmcnt(0)")
    stamp("q")
    vPa, vPb, vR0, vR1, vT0_, vT1_, vU0, vU1, vK, vSd = range(24, 34)
    def kcompute(n, r, sdst=None):
        P = vPa if n % 2 == 0 else vPb
        for d in range(4):
            a("v_dot2_f32_bf16 v%d, v%d, v%d, %s" % (P, r + d, vQ + d, "0" if d == 0 else "v%d" % P))
        if n % 2 == 1:
            Rr = vR0 if (n >> 1) % 2 == 0 else vR1
            a("v_add_f32_dpp v%d, v%d, v%d row_ror:8 row_mask:0xf bank_mask:0x3" % (Rr, vPa, vPa))
            a("v_add_f32_dpp v%d, v%d, v%d row_ror:8 row_mask:0xf bank_mask:0xc" % (Rr, vPb, vPb))
        if n % 4 == 3:
            Tt = vT0_ if (n >> 2) % 2 == 0 else vT1_
            a("v_add_f32_dpp v%d, v%d, v%d row_shl:4 row_mask:0xf bank_mask:0x5" % (Tt, vR0, vR0))
            a("v_add_f32_dpp v%d, v%d, v%d row_shr:4 row_mask:0xf bank_mask:0xa" % (Tt, vR1, vR1))
        if n % 8 == 7:
            U = vU0 if (n >> 3) == 0 else vU1
            a("v_cndmask_b32 v%d, v%d, v%d, s[%d:%d]" % (vK, vT0_, vT1_, sM2, sM2 + 1))
            a("v_cndmask_b32 v%d, v%d, v%d, s[%d:%d]" % (vSd, vT1_, vT0_, sM2, sM2 + 1))
            a("v_add_f32_dpp v%d, v%d, v%d quad_perm:[2,3,0,1] row_mask:0xf bank_mask:0xf" % (U, vSd, vK))
        if n == 15:
            a("v_cndmask_b32 v%d, v%d, v%d, s[%d:%d]" % (vK, vU0, vU1, sM1, sM1 + 1))
            a("v_cndmask_b32 v%d, v%d, v%d, s[%d:%d]" % (vSd, vU1, vU0, sM1, sM1 + 1))
            if sdst is None:
                for t in range(7):
                    a("v_mov_b32 v%d, v%d" % (vS + t, vS + t + 1))
            a("v_add_f32_dpp v%d, v%d, v%d quad_perm:[1,0,3,2] row_mask:0xf bank_mask:0xf" % (vK, vSd, vK))
            rbf(vK, vK)
            a("v_mul_f32 v%d, 0x%x, v%d" % (vK, SCALE, vK))
            rbf(vS + 7 if sdst is None else sdst, vK)
    def sreg(g): return (16, 17, 18, 19, 12, 13, 14, 15)[g]
    early = list(early)[:LA]
    assert len(early) == LA
    issued_new = 0
    PMAX = max(PLA, PW2 or 0)
    consumed = set()
    for m in range(PR):
        cnt = PR - 1 - m + issued_new
        if cnt < PMAX + LA:
            a("s_waitcnt vmcnt(%d)" % cnt)
        kcompute(m % 16, preg(m), sreg(m // 16))
        consumed.add(preg(m))
        if m in early:
            assert vRing + 4 * ((PR + issued_new) % 16) in consumed
            issue(PR + issued_new, True); issued_new += 1
    assert issued_new == LA
    stamp("backlog")
    make_masks(34, 35)
    part_addr(vPA, 34, sWAVE)
    wo_setup(34)
    a("v_lshrrev_b32 v34, 4, v%d" % vLane)
    a("v_mul_u32_u24 v%d, %d, v34" % (vPR, PG))
    a("s_mul_i32 s%d, s%d, %d" % (sT2, sWAVE, 4 * PG))
    a("v_add_u32 v%d, s%d, v%d" % (vPR, sT2, vPR))
    a("v_bfrev_b32 v34, v%d" % vLane)
    a("v_lshrrev_b32 v34, 26, v34")
    a("v_and_b32 v34, 60, v34")
    a("v_add_u32 v%d, v%d, v34" % (vPW, vPR))
    def set_class():
        a("s_cmp_lt_u32 s2, 72")
        a("s_cselect_b64 vcc, -1, 0")
    def adapt():
        a("s_waitcnt lgkmcnt(0)")
        a("s_sub_u32 s%d, s%d, s%d" % (sT2, sTS, sDL))
        a("s_cmp_gt_i32 s%d, 0" % sT2)
        a("s_cselect_b64 vcc, -1, 0")
        a("s_add_u32 s%d, s%d, %d" % (sDL, sDL, ad[1]))
    set_class()
    def publish(tag):
        a("s_cmp_eq_u32 s%d, 0" % sISR)
        a("s_cbranch_scc1 L_np%s" % tag)
        a("s_cmp_lg_u32 s%d, 0" % sWAVE)
        a("s_cbranch_scc1 L_np%s" % tag)
        a("s_lshl2_add_u32 s%d, s%d, s%d" % (sT2, sISR, sEO))
        a("s_sub_u32 s%d, s%d, 4" % (sT2, sT2))
        a("s_mov_b32 s%d, s%d" % (sT3, sMS))
        a("s_atomic_swap s%d, s[%d:%d], s%d" % (sT3, sWS, sWS + 1, sT2))
        a.label("L_np%s" % tag)
    def refload():
        a("s_load_dwordx4 s[%d:%d], s[%d:%d], s%d" % (sREF, sREF + 3, sWS, sWS + 1, sEO))
    if RC or CC: a("s_mov_b32 s%d, 0x%x" % (sEO, WS_RT))
    def wait3(f):
        c = [f(CC[0]), f(CC[1]), f(CC[2])]
        lab[0] += 1
        if c[1] != c[2]: a("s_cbranch_vccnz L_wb%d" % lab[0])
        if c[0] != c[1]:
            a("s_cmp_lg_u32 s%d, 0" % sMODE)
            a("s_cbranch_scc1 L_wm%d" % lab[0])
            a("s_waitcnt vmcnt(%d)" % c[0])
            a.label("L_wm%d" % lab[0])
        a("s_waitcnt vmcnt(%d)" % c[1])
        if c[1] != c[2]:
            a.label("L_wb%d" % lab[0])
            a("s_waitcnt vmcnt(%d)" % c[2])
    def cload():
        a("s_sub_u32 s%d, s%d, 256" % (sT2, sEO))
        a("s_load_dword s%d, s[%d:%d], s%d" % (sREF, sWS, sWS + 1, sT2))
    def ctl(step, fresh, tag):
        lab[0] += 1
        a("s_cmp_lg_u32 s%d, 0" % sRB)
        a("s_cselect_b32 s%d, %s, 0" % (sT2, step))
        a("s_add_u32 s%d, s%d, s%d" % (sRB, sRB, sT2))
        if fresh is not None:
            a("s_sub_u32 s%d, s%d, s%d" % (sT3, sREF, sST0))
            a("s_add_u32 s%d, s%d, %s" % (sT2, sREF, fresh))
            a("s_cmp_lt_u32 s%d, 0x8000" % sT3)
            a("s_cselect_b32 s%d, s%d, s%d" % (sRB, sT2, sRB))
        a("s_sub_u32 s%d, s%d, s%d" % (sT2, sTS, sRB))
        a("s_cmp_eq_u32 s%d, 0" % sRB)
        a("s_cselect_b32 s%d, 0, s%d" % (sT2, sT2))
        a("s_cmp_lg_u32 s%d, 0" % sISR)
        a("s_cselect_b32 s%d, 0, s%d" % (sT2, sT2))
        a("s_cmp_gt_i32 s%d, %d" % (sT2, CC[4]))
        a("s_cselect_b64 vcc, -1, 0")
        a("s_cmp_gt_i32 s%d, %d" % (sT2, CC[3]))
        a("s_cselect_b32 s%d, 1, 0" % sMODE)
    if CC:
        a("s_mov_b64 vcc, 0")
        a("s_mov_b32 s%d, 1" % sMODE)
    ops = ["K%d" % i for i in range(PR, PR + LA)]
    wosteps = [WS0 + ((WS1 - WS0) * k) // 16 for k in range(16)]
    wi = 0
    for m in range(PR, 128):
        if m == 64: stamp("trk")
        if RC and m == 111: a("s_memrealtime s[%d:%d]" % (sTS, sTS + 1))
        if RC and m == 112:
            a("s_waitcnt lgkmcnt(0)")
            a("s_mov_b32 s%d, s%d" % (sMS, sTS))
            publish("k")
        if RC and m == 121: refload()
        if CC:
            G0 = CC[9]; TK = CC[6]
            if m >= 16 * G0 - 1:
                if m % 8 == 7: a("s_memrealtime s[%d:%d]" % (sTS, sTS + 1))
                if m % 8 == 0:
                    a("s_waitcnt lgkmcnt(0)")
                    if m % 16 == 0:
                        if m > 16 * G0: ctl(str(TK // 2), None, "")
                        a("s_mov_b32 s%d, s%d" % (sMS, sTS))
                        publish("k%d" % m)
                        if m > 16 * G0: cload()
                        a("s_add_u32 s%d, s%d, 256" % (sEO, sEO))
                    elif m > 16 * G0 + 8:
                        ctl(str(TK // 2), str(TK + TK // 2), "")
        req = len(ops) - 1 - ops.index("K%d" % m)
        def allowed(w):
            k = 0; n_ = 0
            for o in reversed(ops):
                if o != "W":
                    if k == w - 1: break
                    k += 1
                elif not KX:
                    if k == w - 1: break
                    k += 1; n_ -= 0
                n_ += 1
            return min(req, n_)
        if CC and m >= 16 * CC[9] + 24: wait3(allowed)
        else: wait2(allowed(KW[0]), allowed(KW[0]))
        if m in wosteps:
            wo_load(wi); ops.append("W"); wi += 1
        issue(m + LA, True); ops.append("K%d" % (m + LA))
        kcompute(m % 16, vRing + 4 * (m % 16), sreg(m // 16))
    assert wi == 16 and max(wosteps) <= 127 - LA
    vnext = [LA]
    def vhook():
        if SMI and vnext[0] < 16:
            a("s_waitcnt vmcnt(%d)" % (SW - 1))
            issue(vnext[0], False); vnext[0] += 1
    if not SMI:
        for n in range(LA, VT):
            issue(n, False)
    stamp("kdone")
    vhook()
    vm = vT
    a("v_max3_f32 v%d, v%d, v%d, v%d" % (vm, vS, vS + 1, vS + 2))
    a("v_max3_f32 v%d, v%d, v%d, v%d" % (vm, vm, vS + 3, vS + 4))
    a("v_max3_f32 v%d, v%d, v%d, v%d" % (vm, vm, vS + 5, vS + 6))
    a("v_max_f32 v%d, v%d, v%d" % (vm, vm, vS + 7))
    wave_reduce("v_max_f32", vm, sT2)
    vhook()
    for t in range(8):
        a("v_subrev_f32 v%d, s%d, v%d" % (vT + 2 + t, sT2, vS + t))
    for t in range(8):
        a("v_mul_f32 v%d, 0x%x, v%d" % (vT + 2 + t, LOG2E, vT + 2 + t))
    for t in range(8):
        a("v_exp_f32 v%d, v%d" % (vT + 2 + t, vT + 2 + t))
    a("v_add_f32 v%d, v%d, v%d" % (vT + 1, vT + 2, vT + 3))
    for t in range(2, 8):
        a("v_add_f32 v%d, v%d, v%d" % (vT + 1, vT + 1, vT + 2 + t))
    wave_reduce("v_add_f32", vT + 1, sT3)
    a("v_mov_b32 v%d, s%d" % (vT + 2, sT2)); a("v_mov_b32 v%d, s%d" % (vT + 3, sT3))
    a("s_lshl_b32 s%d, s%d, 3" % (sT2, sWAVE))
    a("v_mov_b32 v%d, s%d" % (vT + 4, sT2))
    a("v_mov_b32 v%d, 0" % (vT + 6)); a("v_mov_b32 v%d, 1" % (vT + 7))
    a("s_mov_b64 exec, 1")
    a("ds_write_b64 v%d, v[%d:%d] offset:%d" % (vT + 4, vT + 2, vT + 3, L_ST))
    a("ds_add_u32 v%d, v%d offset:%d" % (vT + 6, vT + 7, L_CNT + 12))
    a("s_mov_b64 exec, -1")
    a("v_and_b32 v%d, 7, v%d" % (vT + 5, vLane))
    a("v_lshlrev_b32 v%d, 3, v%d" % (vT + 5, vT + 5))
    assert vnext[0] + 2 <= 12 and VT <= 12
    wo_transpose(vhook)
    vhook()
    lds_wait(L_CNT + 12, 8, "sm", vT + 6, vT + 7, 0)
    stamp("B2")
    vhook()
    a("ds_read_b64 v[%d:%d], v%d offset:%d" % (vT + 2, vT + 3, vT + 5, L_ST))
    a("s_waitcnt lgkmcnt(0)")
    vMx = vT + 4
    a("v_max_f32_dpp v%d, v%d, v%d row_ror:4 row_mask:0xf bank_mask:0xf" % (vMx, vT + 2, vT + 2))
    a("v_max_f32_dpp v%d, v%d, v%d row_ror:2 row_mask:0xf bank_mask:0xf" % (vMx, vMx, vMx))
    a("v_max_f32_dpp v%d, v%d, v%d row_ror:1 row_mask:0xf bank_mask:0xf" % (vMx, vMx, vMx))
    a("v_sub_f32 v%d, v%d, v%d" % (vT + 2, vT + 2, vMx))
    for t in range(8):
        a("v_sub_f32 v%d, v%d, v%d" % (vS + t, vS + t, vMx))
    a("v_mul_f32 v%d, 0x%x, v%d" % (vT + 2, LOG2E, vT + 2))
    for t in range(8):
        a("v_mul_f32 v%d, 0x%x, v%d" % (vS + t, LOG2E, vS + t))
    a("v_exp_f32 v%d, v%d" % (vT + 2, vT + 2))
    for t in range(8):
        a("v_exp_f32 v%d, v%d" % (vS + t, vS + t))
    a("v_mul_f32 v%d, v%d, v%d" % (vT + 2, vT + 2, vT + 3))
    for r in (4, 2, 1):
        a("v_add_f32_dpp v%d, v%d, v%d row_ror:%d row_mask:0xf bank_mask:0xf" % (vT + 2, vT + 2, vT + 2, r))
    vhook()
    a("v_rcp_f32 v%d, v%d" % (vT + 3, vT + 2))
    for t in range(8):
        div1(vT + 4, sreg(t), vT + 2, vT + 3, vT + 5)
        a("v_cvt_pk_bf16_f32 v%d, v%d, v%d" % (vT + 6 + (t % 2), vT + 4, vT + 4))
        a("ds_write_b32 v%d, v%d offset:%d" % (vPW, vT + 6 + (t % 2), L_P + 64 * t))
    if not (RC or CC): a("ds_read_b128 v[%d:%d], v%d offset:%d" % (vP0, vP0 + 3, vPR, L_P))
    for r in range(4):
        a("v_mov_b32 v%d, 0" % (vAcc + r))
    vhook()
    tail_prep("ta")
    if SMI: VT = vnext[0]
    stamp("sm")
    if CW:
        a("s_cmp_eq_u32 s%d, 31" % sH)
        a("s_cselect_b64 s[%d:%d], -1, 0" % (sM1, sM1 + 1))
        a("s_or_b64 vcc, vcc, s[%d:%d]" % (sM1, sM1 + 1))
    a("s_mov_b32 s%d, 0" % sCNT)
    if ad: a("s_memrealtime s[%d:%d]" % (sTS, sTS + 1))
    def vbody(first_skip, w, tagname):
        for n in range(16):
            Pc = vP0 if (n >> 2) % 2 == 0 else vP1
            Pn = vP1 if (n >> 2) % 2 == 0 else vP0
            if CC and n == 8:
                a("s_waitcnt lgkmcnt(0)")
                ctl(str(CC[7] // 2), "s%d" % sT0, "")
            if RC or CC:
                Pc = (8, 12, 16, 32)[n >> 2]
            elif n % 4 == 0:
                a("s_waitcnt lgkmcnt(0)")
                a("ds_read_b128 v[%d:%d], v%d offset:%d" % (Pn, Pn + 3, vPR, L_P + 4 * n + 16))
            A = vA0 if n % 2 == 0 else vA1
            for r in range(4):
                a("v_and_b32 v%d, v%d, v%d" % (A + r, Pc + (n % 4), vM + r))
            if CC: wait3(lambda w_: w_ - 1)
            else: wait2(w[0] - 1, w[1] - 1)
            if first_skip and n < VT - LA:
                a("s_cmp_eq_u32 s%d, 0" % sCNT)
                a("s_cbranch_scc1 L_vsk%s%d" % (tagname, n))
            issue(n + LA, False)
            if first_skip and n < VT - LA:
                a.label("L_vsk%s%d" % (tagname, n))
            if CC and n in (7, 15): a("s_memrealtime s[%d:%d]" % (sTS, sTS + 1))
            if RC and n == 9: refload()
            if (ad or V3 or RC) and n == 14: a("s_memrealtime s[%d:%d]" % (sTS, sTS + 1))
            mfma(vAcc, A, vRing + 4 * (n % R), False)
        a("v_add_u32 v%d, 64, v%d" % (vPR, vPR))
        a("s_add_u32 s%d, s%d, 1" % (sCNT, sCNT))
    if VB:
        a("s_cmp_ge_u32 s%d, %d" % (sB, VB[0]))
        a("s_cbranch_scc0 L_vA")
        a("s_cmp_lt_u32 s%d, %d" % (sB, VB[1]))
        a("s_cbranch_scc0 L_vA")
        cur["pol"] = ""
        a.label("L_vB")
        vbody(True, VW, "x")
        a("s_cmp_lt_u32 s%d, 8" % sCNT)
        a("s_cbranch_scc1 L_vB")
        a("s_branch L_vE")
        cur["pol"] = pol
        a.label("L_vA")
        vbody(True, VW, "y")
        a("s_cmp_lt_u32 s%d, 8" % sCNT)
        a("s_cbranch_scc1 L_vA")
        a.label("L_vE")
    elif CC:
        a("s_memrealtime s[%d:%d]" % (sTS, sTS + 1))
        a("s_mov_b32 s%d, %d" % (sT1, CC[6] // 2 + CC[8]))
        a("s_mov_b32 s%d, %d" % (sT0, CC[6] + CC[8] + CC[7] // 2))
        a.label("L_vloop")
        for k, pr in enumerate((8, 12, 16, 32)):
            a("ds_read_b128 v[%d:%d], v%d offset:%d" % (pr, pr + 3, vPR, L_P + 16 * k))
        a("s_waitcnt lgkmcnt(0)")
        ctl("s%d" % sT1, None, "")
        a("s_mov_b32 s%d, s%d" % (sMS, sTS))
        a("s_cmp_eq_u32 s%d, 7" % sCNT)
        a("s_cbranch_scc1 L_npv")
        publish("v")
        cload()
        a("s_add_u32 s%d, s%d, 256" % (sEO, sEO))
        vbody(True, None, "c")
        a("s_mov_b32 s%d, %d" % (sT1, CC[7] // 2))
        a("s_mov_b32 s%d, %d" % (sT0, CC[7] + CC[7] // 2))
        a("s_cmp_lt_u32 s%d, 8" % sCNT)
        a("s_cbranch_scc1 L_vloop")
    elif RC:
        a("s_memrealtime s[%d:%d]" % (sTS, sTS + 1))
        a.label("L_vloop")
        a("s_cmp_ge_u32 s%d, 8" % sCNT)
        a("s_cbranch_scc1 L_vend")
        for k, pr in enumerate((8, 12, 16, 32)):
            a("ds_read_b128 v[%d:%d], v%d offset:%d" % (pr, pr + 3, vPR, L_P + 16 * k))
        a("s_waitcnt lgkmcnt(0)")
        a("s_mov_b32 s%d, -100000" % sT0)
        if RT:
            a("s_cmp_eq_u32 s%d, 0" % sCNT)
            a("s_cselect_b32 s%d, %d, %d" % (sMS, RT[0], RT[1])) if False else None
            a("s_mov_b32 s%d, %d" % (sMS, RT[1]))
            a("s_cselect_b32 s%d, %d, s%d" % (sMS, RT[0], sMS))
            a("s_sub_u32 s%d, s%d, s%d" % (sMS, sTS, sMS))
        for r_ in range(len(RC[5])):
            a("s_sub_u32 s%d, s%d, s%d" % (sT2, sMS, sREF + r_))
            a("s_sub_u32 s%d, s%d, s%d" % (sT3, sREF + r_, sST0))
            a("s_cmp_ge_u32 s%d, 0x100000" % sT3)
            a("s_cselect_b32 s%d, s%d, s%d" % (sT2, sT0, sT2))
            a("s_max_i32 s%d, s%d, s%d" % (sT0, sT0, sT2))
        a("s_mov_b32 s%d, s%d" % (sMS, sTS))
        a("s_add_u32 s%d, s%d, 256" % (sEO, sEO))
        a("s_cmp_eq_u32 s%d, 7" % sCNT)
        a("s_cbranch_scc1 L_npv")
        publish("v")
        a("s_cmp_lg_u32 s%d, 0" % sISR)
        a("s_cbranch_scc1 L_vmid")
        a("s_cmp_gt_i32 s%d, %d" % (sT0, RC[4]))
        a("s_cbranch_scc1 L_vbig")
        a("s_cmp_gt_i32 s%d, %d" % (sT0, RC[3]))
        a("s_cbranch_scc1 L_vmid")
        vbody(True, (RC[0], RC[0]), "s")
        a("s_branch L_vloop")
        a.label("L_vmid")
        vbody(True, (RC[1], RC[1]), "m")
        a("s_branch L_vloop")
        a.label("L_vbig")
        vbody(True, (RC[2], RC[2]), "b")
        a("s_branch L_vloop")
        a.label("L_vend")
    elif V3:
        a("s_memrealtime s[%d:%d]" % (sTS, sTS + 1))
        if V3[3] == 0:
            a("s_waitcnt lgkmcnt(0)")
            a("s_sub_u32 s%d, s%d, 1" % (sDL, sTS))
        a.label("L_vloop")
        a("s_cmp_ge_u32 s%d, 8" % sCNT)
        a("s_cbranch_scc1 L_vend")
        a("s_waitcnt lgkmcnt(0)")
        a("s_sub_u32 s%d, s%d, s%d" % (sT2, sTS, sDL))
        a("s_add_u32 s%d, s%d, %d" % (sDL, sDL, V3[4]))
        a("s_cmp_gt_i32 s%d, %d" % (sT2, V3[5]))
        a("s_cbranch_scc1 L_vbig")
        a("s_cmp_gt_i32 s%d, 0" % sT2)
        a("s_cbranch_scc1 L_vmid")
        vbody(True, (V3[0], V3[0]), "s")
        a("s_branch L_vloop")
        a.label("L_vmid")
        vbody(True, (V3[1], V3[1]), "m")
        a("s_branch L_vloop")
        a.label("L_vbig")
        vbody(True, (V3[2], V3[2]), "b")
        a("s_branch L_vloop")
        a.label("L_vend")
    else:
        a.label("L_vloop")
        if ad: adapt()
        vbody(True, VW, "a")
        a("s_cmp_lt_u32 s%d, %d" % (sCNT, 8 - EN))
        a("s_cbranch_scc1 L_vloop")
        if EN:
            a.label("L_vloop2")
            vbody(False, (EW, EW), "b")
            a("s_cmp_lt_u32 s%d, 8" % sCNT)
            a("s_cbranch_scc1 L_vloop2")
    a("s_waitcnt lgkmcnt(0)")
    a("ds_write_b128 v%d, v[%d:%d] offset:%d" % (vPA, vAcc, vAcc + 3, L_OP))
    if tprio is not None: a("s_setprio %d" % tprio)
    stamp("vdone")
    a.label("L_tail")
    a("s_waitcnt lgkmcnt(0)")
    a("s_barrier")
    stamp("B3")
    for w in range(8):
        a("ds_read_b64 v[%d:%d], v38 offset:%d" % (8 + 2 * w, 9 + 2 * w, L_OP + 512 * w))
    a("s_waitcnt lgkmcnt(4)")
    a("v_pk_add_f32 v[8:9], v[8:9], v[10:11]")
    a("v_pk_add_f32 v[12:13], v[12:13], v[14:15]")
    a("s_waitcnt lgkmcnt(0)")
    a("v_pk_add_f32 v[16:17], v[16:17], v[18:19]")
    a("v_pk_add_f32 v[20:21], v[20:21], v[22:23]")
    a("v_pk_add_f32 v[8:9], v[8:9], v[12:13]")
    a("v_pk_add_f32 v[16:17], v[16:17], v[20:21]")
    a("v_pk_add_f32 v[8:9], v[8:9], v[16:17]")
    a("v_cvt_pk_bf16_f32 v8, v8, v9")
    for k in range(8):
        a("ds_bpermute_b32 v%d, v39, v8 offset:%d" % (24 + k, 128 * (k >> 2) + 4 * (k & 3)))
    vNB = 16
    nibs(vNB, 0)
    vD = 72
    a("s_waitcnt lgkmcnt(4)")
    for j in range(8):
        mfma(vD + 4 * j, 24, vW + 32 + 4 * j, True)
    a("s_waitcnt lgkmcnt(0)")
    for j in (0, 4, 1, 5, 2, 6, 3, 7):
        mfma(vD + 4 * j, 28, vW + 4 * j, False)
    for e in range(4):
        a("v_cndmask_b32 v%d, v%d, v%d, s[%d:%d]" % (20 + e, vD + 4 * e, vD + 4 * (e + 4), sM1, sM1 + 1))
    for e in range(4):
        a("v_permlane32_swap_b32 v%d, v%d" % (20 + e, 12 + e))
    for e in range(4):
        a("v_add_f32_dpp v%d, v%d, v%d row_shl:8 row_mask:0xf bank_mask:0x3" % (20 + e, 12 + e, 20 + e))
    for e in range(4):
        a("v_bfi_b32 v%d, 15, v%d, v%d" % (20 + e, vNB + e, 20 + e))
    a("s_mov_b64 exec, 0x00ff00ff")
    a("buffer_store_dwordx4 v[20:23], v3, s[%d:%d], s%d offen %s" % (rWS, rWS + 3, sPUB, stpol))
    a("s_mov_b64 exec, -1")
    stamp("pub")
    is_consumer()
    a("s_cbranch_scc1 L_fin")
    t0, t1, t4, t5, t6 = 8, 9, 12, 13, 14
    SETS = [40, 104, 136][:NSET]
    a("v_lshrrev_b32 v%d, 4, v%d" % (t0, vLane))
    a("v_and_b32 v%d, 15, v%d" % (t1, vLane))
    a("v_mul_u32_u24 v%d, 2304, v%d" % (t0, t0))
    a("v_lshl_add_u32 v%d, v%d, 4, v%d" % (t0, t1, t0))
    a("s_mul_i32 s%d, s%d, %d" % (sT2, sB, 32 * 2304))
    a("s_add_u32 s%d, s%d, s%d" % (sT2, sT2, sU))
    def gather_issue(G):
        a("s_mov_b32 s%d, s%d" % (sT3, sT2))
        for i in range(8):
            a("buffer_load_dwordx4 v[%d:%d], v%d, s[%d:%d], s%d offen sc1" % (G + 4 * i, G + 3 + 4 * i, t0, rWS, rWS + 3, sT3))
            if i < 7: a("s_add_u32 s%d, s%d, %d" % (sT3, sT3, 4 * 2304))
    xfin_addr(t4, t5)
    a("v_lshlrev_b32 v%d, 2, v%d" % (t5, t4))
    a("v_lshlrev_b32 v%d, 1, v%d" % (t4, t4))
    a("s_lshl_b32 s%d, s%d, 7" % (sT1, sUN))
    a("buffer_load_ushort v%d, v%d, s[%d:%d], s%d offen" % (vXf, t4, rA, rA + 3, sT1))
    if P0: a("s_sleep %d" % P0)
    gather_issue(SETS[0])
    a("v_add_u32 v%d, s%d, v%d" % (t5, sU, t5))
    a("ds_read_b32 v%d, v%d offset:%d" % (t6, t5, L_G))
    a("v_mov_b32 v10, 0")
    a("ds_read_b32 v15, v10 offset:%d" % (L_CNT + 16))
    a("s_mul_i32 s%d, s%d, 1152" % (sT0, sB))
    srd_off(rB, sOUT, sT0, 1160)
    a("s_mov_b32 s%d, 0" % sCNT)
    a("s_waitcnt lgkmcnt(0)")
    tag16(t5, 15, 0)
    nibs(vNB, t5)
    for G in SETS[1:]:
        a("s_sleep %d" % (10 // NSET))
        gather_issue(G)
    a.label("L_poll")
    for si, G in enumerate(SETS):
        a("s_waitcnt vmcnt(%d)" % (8 * (NSET - 1)))
        for k in range(4):
            for i in range(0, 8, 2):
                a("v_bitop3_b32 v%d, v%d, v%d, v%d bitop3:0x7e" % (24 + 4 * k + i // 2, G + 4 * i + k, G + 4 * i + 4 + k, vNB + k))
        for p_ in range(4):
            a("v_or3_b32 v%d, v%d, v%d, v%d" % (24 + p_, 24 + p_, 28 + p_, 32 + p_))
        for p_ in range(4):
            a("v_or_b32 v%d, v%d, v%d" % (24 + p_, 24 + p_, 36 + p_))
        a("v_or3_b32 v28, v24, v25, v26")
        a("v_or_b32 v28, v28, v27")
        a("v_and_b32 v28, 15, v28")
        a("v_cmp_ne_u32 vcc, 0, v28")
        a("s_cbranch_vccz L_got%d" % si)
        if PS: a("s_sleep %d" % PS)
        if not SEL:
            gather_issue(G)
        else:
            for p_ in range(4):
                a("v_and_b32 v28, 15, v%d" % (24 + p_))
                a("v_cmp_ne_u32 vcc, 0, v28")
                a("s_add_u32 s%d, s%d, %d" % (sT3, sT2, 8 * 2304 * p_))
                a("s_cbranch_vccz L_sk%d%d" % (si, p_))
                a("buffer_load_dwordx4 v[%d:%d], v%d, s[%d:%d], s%d offen sc1" % (G + 8 * p_, G + 8 * p_ + 3, t0, rWS, rWS + 3, sT3))
                a("s_add_u32 s%d, s%d, %d" % (sT3, sT3, 4 * 2304))
                a("buffer_load_dwordx4 v[%d:%d], v%d, s[%d:%d], s%d offen sc1" % (G + 8 * p_ + 4, G + 8 * p_ + 7, t0, rWS, rWS + 3, sT3))
                a.label("L_sk%d%d" % (si, p_))
    a("s_add_u32 s%d, s%d, 1" % (sCNT, sCNT))
    a("s_cmp_lt_u32 s%d, 0x100000" % sCNT)
    a("s_cbranch_scc1 L_poll")
    a("s_branch L_fin")
    def xreduce(g):
        a("v_permlane32_swap_b32 v%d, v%d" % (g, g + 1))
        a("v_permlane32_swap_b32 v%d, v%d" % (g + 2, g + 3))
        a("v_add_f32 v%d, v%d, v%d" % (g, g, g + 1))
        a("v_add_f32 v%d, v%d, v%d" % (g + 2, g + 2, g + 3))
        a("v_permlane16_swap_b32 v%d, v%d" % (g, g + 2))
        a("v_add_f32 v%d, v%d, v%d" % (g, g, g + 2))
    for si, G in reversed(list(enumerate(SETS))):
        a.label("L_got%d" % si)
        for k in range(32):
            a("v_and_b32 v%d, -16, v%d" % (G + k, G + k))
        for st in (16, 8, 4):
            for k in range(0, st, 2):
                d = G + k if st > 4 else 24 + k
                a("v_pk_add_f32 v[%d:%d], v[%d:%d], v[%d:%d]" % (d, d + 1, G + k, G + 1 + k, G + k + st, G + 1 + k + st))
        if si > 0: a("s_branch L_fsum")
    a.label("L_fsum")
    G = 24
    xreduce(G)
    a("v_lshlrev_b32 v%d, 16, v%d" % (vXf, vXf))
    rbf(G, G)
    a("v_mul_f32 v%d, v%d, v%d" % (G, G, t6))
    rbf(G, G)
    a("v_add_f32 v%d, v%d, v%d" % (G, G, vXf))
    a("v_cvt_pk_bf16_f32 v%d, v%d, v%d" % (G, G, G))
    a("buffer_store_short v%d, v%d, s[%d:%d], s%d offen" % (G, t4, rB, rB + 3, sT1))
    stamp("fin")
    a.label("L_fin")
    stamp_flush()
    a("s_endpgm")
    a.label("L_w")
    if wprio: a("s_setprio %d" % wprio)
    a("s_sub_u32 s%d, s%d, 8" % (sWK, sWAVE))
    a("v_mov_b32 v8, 0"); a("v_mov_b32 v9, 0"); a("v_mov_b32 v10, 0"); a("v_mov_b32 v11, 0")
    a("ds_write_b128 v8, v[8:11] offset:%d" % L_CNT)
    a("ds_write_b128 v8, v[8:11] offset:%d" % (L_CNT + 16))
    a("v_lshlrev_b32 v0, 1, v%d" % vLane)
    a("v_lshrrev_b32 v21, 4, v%d" % vLane)
    a("v_and_b32 v22, 15, v%d" % vLane)
    a("v_mul_u32_u24 v3, 0x%x, v21" % (36 * 8192))
    a("v_lshl_add_u32 v3, v22, 4, v3")
    a("s_mul_i32 s%d, s%d, 0x%x" % (sT2, sWK, 144 * 8192))
    a("s_waitcnt lgkmcnt(0)")
    a("s_barrier")
    a("s_or_b32 s%d, s2, s%d" % (sT3, sWK))
    a("s_cmp_lg_u32 s%d, 0" % sT3)
    a("s_cbranch_scc1 L_wni")
    a("s_memrealtime s[%d:%d]" % (sTS, sTS + 1))
    a("s_waitcnt lgkmcnt(0)")
    a("s_or_b32 s%d, s%d, 1" % (sT3, sTS))
    a("v_mov_b32 v10, s%d" % sT3)
    a("s_mov_b64 exec, 1")
    a("global_atomic_cmpswap v8, v[10:11], s[%d:%d] sc1" % (sDBG, sDBG + 1))
    a("s_mov_b64 exec, -1")
    a("s_nop 1")
    a.label("L_wni")
    srd_off(rA, sX, sT0, 1160)
    vX = 12
    a("buffer_load_dwordx4 v[8:11], v%d, s[%d:%d], 0 offen nt" % (vOff16, rA, rA + 3))
    a("buffer_load_ushort v20, v0, s[%d:%d], 0 offen offset:1024 nt" % (rA, rA + 3))
    srd_off(rB, sWQ, sT1, "s_sub_u32 s%%d, 0x%x, s%d" % (576 * 8192, sT1))
    vWQ = 24
    NWR = 10
    assert WQ0 < NWR
    if nowq: a("s_mov_b32 s%d, 0x70000000" % sT2)
    a("s_mov_b32 s%d, s%d" % (sWOFF, sT2))
    def wq_load(i):
        r = vWQ + 4 * (i % NWR)
        a("buffer_load_dwordx4 v[%d:%d], v2, s[%d:%d], s%d offen %s" % (r, r + 3, rB, rB + 3, sWOFF, wqpol))
        if i < 35: a("s_add_u32 s%d, s%d, 0x2000" % (sWOFF, sWOFF))
    a("v_mov_b32 v2, v3")
    for i in range(WQ0):
        wq_load(i)
    vACC = 32; vTB = 24; vZ = 64; vXR = 24; vAF = 8; vWO = 68
    STB = (104, 136, 72)
    sROLE, sIDX, sSTR, sBST = sM1, sM1 + 1, sVlo, sVhi
    a("s_add_u32 s%d, s%d, %d" % (sROLE, sJ, JROT))
    a("s_and_b32 s%d, s%d, 31" % (sROLE, sROLE))
    if nomlp: a("s_mov_b32 s%d, 31" % sROLE)
    a("v_and_b32 v69, 7, v%d" % vLane)
    a("v_lshrrev_b32 v70, 3, v%d" % vLane)
    a("s_cmp_eq_u32 s%d, 0" % sWK)
    a("s_cbranch_scc1 L_ns0")
    a("s_cmp_ge_u32 s%d, 18" % sROLE)
    a("s_cbranch_scc1 L_ns2")
    a("s_sub_u32 s%d, s%d, 9" % (sIDX, sROLE))
    a("s_cmp_lt_u32 s%d, 9" % sROLE)
    a("s_cselect_b32 s%d, s%d, s%d" % (sIDX, sROLE, sIDX))
    a("s_cselect_b32 s%d, s%d, s%d" % (sT2, sW1, sW3))
    a("s_cselect_b32 s%d, s%d, s%d" % (sT3, sW1 + 1, sW3 + 1))
    a("s_mul_i32 s%d, s%d, 9" % (sT0, sXG))
    a("s_add_u32 s%d, s%d, s%d" % (sIDX, sIDX, sT0))
    a("s_lshl_b32 s%d, s%d, 7" % (sT0, sIDX))
    a("s_add_u32 s%d, s%d, s%d" % (rKV, sT2, sT0))
    a("s_addc_u32 s%d, s%d, 0" % (rKV + 1, sT3))
    a("s_sub_u32 s%d, 0x%x, s%d" % (rKV + 2, 576 * 9216, sT0))
    a("s_mov_b32 s%d, 9216" % sSTR)
    a("s_mov_b32 s%d, %d" % (sBST, 57 * 9216))
    a("s_mov_b32 s%d, %d" % (sT1, 8 * 9216))
    a("s_branch L_nsj")
    a.label("L_ns2")
    a("s_sub_u32 s%d, s%d, 18" % (sIDX, sROLE))
    a("s_mul_i32 s%d, s%d, %d" % (sT0, sXG, 576 * 1152))
    a("s_lshl_b32 s%d, s%d, 7" % (sT1, sIDX))
    a("s_add_u32 s%d, s%d, s%d" % (sT0, sT0, sT1))
    a("s_cmp_ge_u32 s%d, 27" % sROLE)
    a("s_cselect_b32 s%d, 0, s%d" % (sT0, sT0))
    a("s_cselect_b32 s%d, 0, 0x%x" % (sT1, 4608 * 1152))
    a("s_add_u32 s%d, s%d, s%d" % (rKV, sW2, sT0))
    a("s_addc_u32 s%d, s%d, 0" % (rKV + 1, sW2 + 1))
    a("s_sub_u32 s%d, s%d, s%d" % (rKV + 2, sT1, sT0))
    a("s_mov_b32 s%d, 1152" % sSTR)
    a("s_mov_b32 s%d, %d" % (sBST, 57 * 1152))
    a("s_mov_b32 s%d, %d" % (sT1, 8 * 1152))
    a.label("L_nsj")
    if 'l' in mno: a("s_mov_b32 s%d, 0" % (rKV + 2))
    a("s_sub_u32 s%d, s%d, 1" % (sT2, sWK))
    a("s_mul_i32 s%d, s%d, 192" % (sT2, sT2))
    a("s_mul_i32 s%d, s%d, s%d" % (sOFF, sT2, sSTR))
    a("s_branch L_nse")
    a.label("L_ns0")
    a("s_mul_i32 s%d, s%d, 0x%x" % (sT0, sH, 128 * 1152))
    a("s_add_u32 s%d, s%d, 1024" % (sT0, sT0))
    a("s_add_u32 s%d, s%d, s%d" % (rKV, sWO, sT0))
    a("s_addc_u32 s%d, s%d, 0" % (rKV + 1, sWO + 1))
    a("s_sub_u32 s%d, 0x%x, s%d" % (rKV + 2, 4096 * 1152, sT0))
    if nowo: a("s_mov_b32 s%d, 0" % (rKV + 2))
    a("s_mov_b32 s%d, 1152" % sSTR)
    a("s_mov_b32 s%d, %d" % (sBST, 57 * 1152))
    a("s_mov_b32 s%d, %d" % (sT1, 8 * 1152))
    a("s_mov_b32 s%d, 0" % sOFF)
    a.label("L_nse")
    a("s_mov_b32 s%d, 0x20000" % (rKV + 3))
    a("v_mul_lo_u32 v%d, v70, s%d" % (vWO, sT1))
    a("v_lshl_add_u32 v%d, v69, 4, v%d" % (vWO, vWO))
    def ns_load(k, pace=None):
        r = STB[k // 8] + 4 * (k % 8)
        if pace is not None: a("s_waitcnt vmcnt(%d)" % (pace - 1))
        a("buffer_load_dwordx4 v[%d:%d], v%d, s[%d:%d], s%d offen %s" % (r, r + 3, vWO, rKV, rKV + 3, sOFF, mpol))
        a("s_add_u32 s%d, s%d, s%d" % (sOFF, sOFF, sSTR if k % 8 < 7 else sBST))
    stamp("issued")
    common_setup()
    make_masks(22, 23)
    a("s_mul_i32 s%d, s%d, 2304" % (sT2, sWK))
    a("v_lshl_add_u32 v3, v%d, 5, s%d" % (vLane, sT2))
    a("s_mul_i32 s%d, s%d, 2880" % (sT3, sWK))
    a("v_mul_u32_u24 v0, 144, v21")
    a("v_add_u32 v0, s%d, v0" % sT3)
    a("s_waitcnt vmcnt(%d)" % WQ0)
    for k in range(4):
        a("v_lshlrev_b32 v%d, 16, v%d" % (vX + 2 * k, 8 + k))
        a("v_and_b32 v%d, 0xffff0000, v%d" % (vX + 2 * k + 1, 8 + k))
    a("v_lshlrev_b32 v20, 16, v20")
    vs = 8
    a("v_add_f32 v%d, v%d, v%d" % (vs, vX, vX + 1))
    for t in range(2, 9):
        a("v_add_f32 v%d, v%d, v%d" % (vs, vs, vX + t))
    wave_reduce("v_add_f32", vs, sT3)
    vmean = 9
    a("v_mov_b32 v%d, 0x%x" % (vmean, INV576))
    a("v_mul_f32 v%d, s%d, v%d" % (vmean, sT3, vmean))
    a("v_sub_f32 v10, v%d, v%d" % (vX, vmean))
    a("v_mul_f32 v%d, v10, v10" % vs)
    for t in range(1, 9):
        a("v_sub_f32 v10, v%d, v%d" % (vX + t, vmean))
        a("v_fmac_f32 v%d, v10, v10" % vs)
    wave_reduce("v_add_f32", vs, sT3)
    a("v_mov_b32 v10, 0x%x" % INV576)
    a("v_mul_f32 v10, s%d, v10" % sT3)
    ln_scalars(vmean, 10, 8, 11, 21)
    for t in range(9):
        a("v_sub_f32 v%d, v%d, v8" % (vX + t, vX + t))
    for t in range(9):
        rbf(vX + t, vX + t)
    for t in range(9):
        div1(9, vX + t, 11, 21, 10)
        a("v_cvt_pk_bf16_f32 v%d, v9, v9" % (vX + t))
    a("ds_write_b128 v3, v[12:15] offset:%d" % L_XD)
    a("ds_write_b128 v3, v[16:19] offset:%d" % (L_XD + 16))
    a("v_lshlrev_b32 v22, 2, v%d" % vLane)
    a("v_add_u32 v22, s%d, v22" % sT2)
    a("ds_write_b32 v22, v20 offset:%d" % (L_XD + 2048))
    a("ds_read_b128 v[12:15], v0 offset:%d" % L_XD)
    stamp("ln")
    nsi = 0
    for i in range(36):
        Xc = 12 if (i >> 2) % 2 == 0 else 16
        Xn = 16 if (i >> 2) % 2 == 0 else 12
        if i + WQ0 < 36: wq_load(i + WQ0)
        elif nsi < NC:
            ns_load(nsi); nsi += 1
        if i % 4 == 0:
            a("s_waitcnt lgkmcnt(0)")
            if i + 4 < 36:
                a("ds_read_b128 v[%d:%d], v0 offset:%d" % (Xn, Xn + 3, L_XD + 4 * i + 16))
        for r in range(4):
            a("v_and_b32 v%d, v%d, v%d" % (20 + r, Xc + (i % 4), vM + r))
        a("s_waitcnt vmcnt(%d)" % (min(WQ0, 35 - i) + nsi))
        mfma(8, 20, vWQ + 4 * (i % NWR), i == 0)
    for k in range(NC2):
        ns_load(nsi); nsi += 1
    assert nsi <= 16
    a("v_lshlrev_b32 v%d, 4, v%d" % (vOff16, vLane))
    part_addr(0, 3, sWK)
    a("ds_write_b128 v0, v[8:11] offset:%d" % L_QP)
    a("v_mov_b32 v12, 0"); a("v_mov_b32 v13, 1")
    a("s_mov_b64 exec, 1")
    a("ds_add_rtn_u32 v14, v12, v13 offset:%d" % (L_CNT + 8))
    a("s_mov_b64 exec, -1")
    a("v_lshlrev_b32 v15, 3, v%d" % vLane)
    a("s_waitcnt lgkmcnt(0)")
    a("v_readfirstlane_b32 s%d, v14" % sT2)
    a("s_cmp_lg_u32 s%d, 3" % sT2)
    a("s_cbranch_scc1 L_qnl")
    for k in range(4):
        a("ds_read_b64 v[%d:%d], v15 offset:%d" % (16 + 2 * k, 17 + 2 * k, L_QP + 512 * k))
    a("v_lshlrev_b32 v15, 2, v%d" % vLane)
    a("s_waitcnt lgkmcnt(0)")
    a("v_pk_add_f32 v[16:17], v[16:17], v[18:19]")
    a("v_pk_add_f32 v[20:21], v[20:21], v[22:23]")
    a("v_pk_add_f32 v[16:17], v[16:17], v[20:21]")
    a("v_cvt_pk_bf16_f32 v16, v16, v17")
    a("ds_write_b32 v15, v16 offset:%d" % L_QF)
    a("s_mov_b64 exec, 1")
    a("ds_write_b32 v12, v13 offset:%d" % (L_CNT + 20))
    a("s_mov_b64 exec, -1")
    a.label("L_qnl")
    if wprio: a("s_setprio 0")
    stamp("qmf")
    a("s_cmp_eq_u32 s%d, 0" % sWK)
    a("s_cbranch_scc1 L_w0")
    a("s_cmp_ge_u32 s%d, 27" % sROLE)
    a("s_cbranch_scc1 L_fin")
    a("s_sub_u32 s%d, s%d, 1" % (sWK, sWK))
    a("s_mov_b32 s%d, 0x05040100" % sSEL0)
    a("s_mov_b32 s%d, 0x07060302" % sSEL1)
    a("s_cmp_ge_u32 s%d, 18" % sROLE)
    a("s_cbranch_scc1 L_dn")
    srd(rA, sX, 8 * 1152 if 'x' not in mno else 0)
    a("v_mul_u32_u24 v22, 1152, v69")
    a("v_lshl_add_u32 v22, v70, 4, v22")
    for blk in range(9):
        a("buffer_load_dwordx4 v[%d:%d], v22, s[%d:%d], 0 offen offset:%d" % (vXR + 4 * blk, vXR + 4 * blk + 3, rA, rA + 3, 128 * blk))
    a("s_mul_i32 s%d, s%d, 384" % (sT2, sWK))
    for q in range(3):
        a("buffer_load_dwordx4 v[%d:%d], v22, s[%d:%d], s%d offen offset:%d" % (vAF + 4 * q, vAF + 4 * q + 3, rA, rA + 3, sT2, 128 * q))
    a("v_mov_b32 v61, 0x3f803f80")
    a("s_waitcnt vmcnt(0)")
    for k in range(nsi, nsi + MW):
        ns_load(k)
    for k in range(36):
        a("v_dot2_f32_bf16 v60, v%d, v61, %s" % (vXR + k, "0" if k == 0 else "v60"))
    def red8(v, t):
        a("v_add_f32_dpp v%d, v%d, v%d row_ror:8 row_mask:0xf bank_mask:0xf" % (v, v, v))
        a("v_mov_b32 v%d, v%d" % (t, v))
        a("v_permlane16_swap_b32 v%d, v%d" % (v, t))
        a("v_add_f32 v%d, v%d, v%d" % (v, v, t))
        a("v_mov_b32 v%d, v%d" % (t, v))
        a("v_permlane32_swap_b32 v%d, v%d" % (v, t))
        a("v_add_f32 v%d, v%d, v%d" % (v, v, t))
    red8(60, 61)
    a("v_mul_f32 v60, 0x%x, v60" % (INV576 | 0x80000000))
    a("v_mov_b32 v61, v60")
    a("v_mov_b32 v62, 0"); a("v_mov_b32 v63, 0")
    for k in range(36):
        t = 20 + 2 * (k % 2)
        a("v_lshlrev_b32 v%d, 16, v%d" % (t, vXR + k))
        a("v_and_b32 v%d, 0xffff0000, v%d" % (t + 1, vXR + k))
        a("v_pk_add_f32 v[%d:%d], v[%d:%d], v[60:61]" % (t, t + 1, t, t + 1))
        a("v_pk_fma_f32 v[62:63], v[%d:%d], v[%d:%d], v[62:63]" % (t, t + 1, t, t + 1))
    a("v_add_f32 v62, v62, v63")
    red8(62, 63)
    a("v_mul_f32 v62, 0x%x, v62" % INV576)
    a("v_sub_f32 v60, 0, v60")
    ln_scalars(60, 62, 61, 63, 22)
    for k in range(12):
        a("v_lshlrev_b32 v24, 16, v%d" % (vAF + k))
        a("v_and_b32 v25, 0xffff0000, v%d" % (vAF + k))
        a("v_sub_f32 v24, v24, v61")
        a("v_sub_f32 v25, v25, v61")
        a("v_cvt_pk_bf16_f32 v25, v24, v25")
        a("v_lshlrev_b32 v24, 16, v25")
        a("v_and_b32 v25, 0xffff0000, v25")
        div1(26, 24, 63, 22, 27)
        div1(24, 25, 63, 22, 27)
        a("v_cvt_pk_bf16_f32 v%d, v26, v24" % (vAF + k))
    for k in range(nsi + MW, 24):
        ns_load(k, MW)
    stamp("aux_ln")
    lds_wait(L_CNT + 16, 1, "n1", 21, 22, 8)
    a("s_branch L_mm")
    a.label("L_dn")
    for k in range(nsi, 24):
        ns_load(k, MW)
    lds_wait(L_CNT + 16, 1, "n2", 21, 22, 8)
    tag16(21, 22, 0)
    a("s_mul_i32 s%d, s%d, 9" % (sT2, sXG))
    a("s_mul_i32 s%d, s%d, 3" % (sT3, sWK))
    a("s_add_u32 s%d, s%d, s%d" % (sT2, sT2, sT3))
    a("s_lshl_b32 s%d, s%d, 12" % (sT2, sT2))
    a("s_add_u32 s%d, s%d, 0x%x" % (sT2, sT2, WS_H))
    a("s_mov_b32 s%d, 0" % sCNT)
    HR = [24 + 4 * k for k in range(12)]
    for k in range(HD): a("s_sleep 127")
    if PROBE:
        a("s_add_u32 s%d, s%d, %d" % (sT3, sT2, 2 * 4096))
        a("s_mov_b64 exec, 0xff")
        a.label("L_hq")
        a("buffer_load_dwordx4 v[24:27], v%d, s[%d:%d], s%d offen sc1" % (vOff16, rWS, rWS + 3, sT3))
        a("buffer_load_dwordx4 v[28:31], v%d, s[%d:%d], s%d offen offset:2048 sc1" % (vOff16, rWS, rWS + 3, sT3))
        a("s_waitcnt vmcnt(0)")
        a("v_bitop3_b32 v8, v24, v28, v21 bitop3:0x7e")
        a("v_and_b32 v8, 0xffff, v8")
        a("v_cmp_ne_u32 vcc, 0, v8")
        a("s_cbranch_vccz L_hqo")
        a("s_add_u32 s%d, s%d, 1" % (sCNT, sCNT))
        a("s_cmp_gt_u32 s%d, 0x40000" % sCNT)
        a("s_cbranch_scc1 L_hqo")
        for k in range(hs2): a("s_sleep %d" % hsleep)
        a("s_branch L_hq")
        a.label("L_hqo")
        a("s_mov_b64 exec, -1")
    a.label("L_hp")
    a("s_mov_b32 s%d, s%d" % (sT3, sT2))
    if 'g' in mno: a("s_mov_b32 s%d, 0x7000000" % sT3)
    for k in range(12):
        a("buffer_load_dwordx4 v[%d:%d], v%d, s[%d:%d], s%d offen offset:%d sc1" % (HR[k], HR[k] + 3, vOff16, rWS, rWS + 3, sT3, 1024 * (k % 4)))
        if k % 4 == 3 and k < 11: a("s_add_u32 s%d, s%d, 4096" % (sT3, sT3))
    a("s_waitcnt vmcnt(0)")
    a("v_mov_b32 v20, 0")
    for k in range(12):
        a("v_bitop3_b32 v8, v%d, v%d, v21 bitop3:0x7e" % (HR[k], HR[k] + 1))
        a("v_bitop3_b32 v9, v%d, v%d, v21 bitop3:0x7e" % (HR[k] + 2, HR[k] + 3))
        a("v_or3_b32 v20, v20, v8, v9")
    a("v_and_b32 v20, 0xffff, v20")
    a("v_cmp_ne_u32 vcc, 0, v20")
    a("s_cbranch_vccz L_hok" if 'h' not in mno else "s_branch L_hok")
    a("s_add_u32 s%d, s%d, 1" % (sCNT, sCNT))
    a("s_cmp_gt_u32 s%d, 0x40000" % sCNT)
    a("s_cbranch_scc1 L_hok")
    a("s_sleep %d" % hsleep)
    a("s_branch L_hp")
    a.label("L_hok")
    for q in range(3):
        for hf in range(2):
            sg = HR[4 * q + hf]; up = HR[4 * q + 2 + hf]
            for e in range(4):
                a("v_and_b32 v%d, 0xffff0000, v%d" % (sg + e, sg + e))
                a("v_and_b32 v%d, 0xffff0000, v%d" % (up + e, up + e))
                a("v_mul_f32 v%d, v%d, v%d" % (sg + e, sg + e, up + e))
            a("v_cvt_pk_bf16_f32 v%d, v%d, v%d" % (vAF + 4 * q + 2 * hf, sg, sg + 1))
            a("v_cvt_pk_bf16_f32 v%d, v%d, v%d" % (vAF + 4 * q + 2 * hf + 1, sg + 2, sg + 3))
    stamp("aux_h")
    a.label("L_mm")
    def blk_mfma(q, A, first_zero):
        for j in range(8):
            B = vTB + 4 * (j % 2)
            for r in range(4):
                s0 = STB[q] + 4 * (2 * r + 1) + (j >> 1)
                s1 = STB[q] + 4 * (2 * r) + (j >> 1)
                a("v_perm_b32 v%d, v%d, v%d, s%d" % (B + r, s0, s1, sSEL1 if j & 1 else sSEL0))
            mfma(vACC + 4 * j, A, B, first_zero)
    for q in range(3):
        a("s_waitcnt vmcnt(%d)" % (16 - 8 * q))
        blk_mfma(q, vAF + 4 * q, q == 0)
    for j in range(8):
        D = vACC + 4 * j
        a("v_permlane32_swap_b32 v%d, v%d" % (D, D + 1))
        a("v_permlane32_swap_b32 v%d, v%d" % (D + 2, D + 3))
    for j in range(8):
        D = vACC + 4 * j
        a("v_add_f32_dpp v%d, v%d, v%d row_shl:8 row_mask:0xf bank_mask:0x3" % (vZ + j, D + 1, D))
        a("v_add_f32_dpp v%d, v%d, v%d row_shr:8 row_mask:0xf bank_mask:0xc" % (vZ + j, D + 2, D + 3))
    a("s_lshl_b32 s%d, s%d, 11" % (sT2, sWK))
    a("v_lshlrev_b32 v23, 5, v%d" % vLane)
    a("v_add_u32 v20, s%d, v23" % sT2)
    a("ds_write_b128 v20, v[%d:%d] offset:%d" % (vZ, vZ + 3, L_ZX))
    a("ds_write_b128 v20, v[%d:%d] offset:%d" % (vZ + 4, vZ + 7, L_ZX + 16))
    lds_sig(L_CNT, 21, 24)
    a("s_cmp_lg_u32 s%d, 0" % sWK)
    a("s_cbranch_scc1 L_fin")
    lds_wait(L_CNT, 3, "z", 21, 24, 2)
    for k in range(3):
        a("ds_read_b128 v[%d:%d], v23 offset:%d" % (vACC + 8 * k, vACC + 8 * k + 3, L_ZX + 2048 * k))
        a("ds_read_b128 v[%d:%d], v23 offset:%d" % (vACC + 8 * k + 4, vACC + 8 * k + 7, L_ZX + 2048 * k + 16))
    a("v_bfe_u32 v24, v%d, 3, 2" % vLane)
    a("v_lshlrev_b32 v24, 1, v24")
    a("v_lshrrev_b32 v25, 5, v%d" % vLane)
    a("v_add_u32 v24, v24, v25")
    a("v_and_b32 v25, 7, v%d" % vLane)
    a("s_waitcnt lgkmcnt(0)")
    for e in range(0, 8, 2):
        a("v_pk_add_f32 v[%d:%d], v[%d:%d], v[%d:%d]" % (vZ + e, vZ + e + 1, vACC + e, vACC + e + 1, vACC + 8 + e, vACC + 9 + e))
    for e in range(0, 8, 2):
        a("v_pk_add_f32 v[%d:%d], v[%d:%d], v[%d:%d]" % (vZ + e, vZ + e + 1, vZ + e, vZ + e + 1, vACC + 16 + e, vACC + 17 + e))
    a("s_cmp_ge_u32 s%d, 18" % sROLE)
    a("s_cbranch_scc1 L_dnp")
    for j in range(8):
        rbf(vZ + j, vZ + j)
    a("s_lshl_b32 s%d, s%d, 12" % (sT2, sIDX))
    a("s_add_u32 s%d, s%d, 0x%x" % (sT2, sT2, WS_H + 2048))
    a("s_cmp_ge_u32 s%d, 9" % sROLE)
    a("s_cbranch_scc1 L_upp")
    a("s_sub_u32 s%d, s%d, 2048" % (sT2, sT2))
    for j in range(8):
        silu(vZ + j, vZ + j, 26)
        rbf(vZ + j, vZ + j)
    a.label("L_upp")
    tag16(21, 22, 5)
    for j in range(8):
        a("v_or_b32 v%d, v%d, v21" % (vZ + j, vZ + j))
    a("v_lshl_add_u32 v24, v25, 3, v24")
    a("v_lshlrev_b32 v24, 4, v24")
    if 's' in mno: a("s_mov_b32 s%d, 0x7000000" % sT2)
    a("buffer_store_dwordx4 v[%d:%d], v24, s[%d:%d], s%d offen sc1" % (vZ, vZ + 3, rWS, rWS + 3, sT2))
    a("buffer_store_dwordx4 v[%d:%d], v24, s[%d:%d], s%d offen offset:1024 sc1" % (vZ + 4, vZ + 7, rWS, rWS + 3, sT2))
    stamp("aux_s1")
    a("s_branch L_fin")
    a.label("L_dnp")
    tag16(21, 22, 0)
    nibs(8, 21)
    for j in range(8):
        a("v_bfi_b32 v%d, 15, v%d, v%d" % (vZ + j, 8 + (j % 4), vZ + j))
    a("v_mul_u32_u24 v24, %d, v24" % (8 * 2304))
    a("v_lshl_add_u32 v24, v25, 4, v24")
    a("s_mul_i32 s%d, s%d, 2304" % (sT2, sXG))
    a("s_lshl_b32 s%d, s%d, 8" % (sT3, sIDX))
    a("s_add_u32 s%d, s%d, s%d" % (sT2, sT2, sT3))
    a("s_add_u32 s%d, s%d, 0x%x" % (sT2, sT2, WS_MO))
    if 's' in mno: a("s_mov_b32 s%d, 0x7000000" % sT2)
    a("buffer_store_dwordx4 v[%d:%d], v24, s[%d:%d], s%d offen sc1" % (vZ, vZ + 3, rWS, rWS + 3, sT2))
    a("buffer_store_dwordx4 v[%d:%d], v24, s[%d:%d], s%d offen offset:128 sc1" % (vZ + 4, vZ + 7, rWS, rWS + 3, sT2))
    stamp("aux_mlp")
    a("s_branch L_fin")
    a.label("L_w0")
    if WOPF: wo_prefetch()
    a("v_mov_b32 v12, 0")
    a("global_load_dword v13, v12, s[%d:%d] sc1" % (sDBG, sDBG + 1))
    a("s_memrealtime s[%d:%d]" % (sTS, sTS + 1))
    a("s_waitcnt vmcnt(0) lgkmcnt(0)")
    a("v_readfirstlane_b32 s%d, v13" % sT2)
    a("s_cmp_lg_u32 s%d, 0" % sT2)
    a("s_cbranch_scc1 L_nok")
    a("s_or_b32 s%d, s%d, 1" % (sT3, sTS))
    a("v_mov_b32 v14, s%d" % sT3)
    a("v_mov_b32 v15, 0")
    a("s_mov_b64 exec, 1")
    a("global_atomic_cmpswap v13, v12, v[14:15], s[%d:%d] sc0 sc1" % (sDBG, sDBG + 1))
    a("s_mov_b64 exec, -1")
    a("s_waitcnt vmcnt(0)")
    a("v_readfirstlane_b32 s%d, v13" % sT2)
    a("s_cmp_eq_u32 s%d, 0" % sT2)
    a("s_cselect_b32 s%d, s%d, s%d" % (sT2, sT3, sT2))
    a.label("L_nok")
    a("v_mov_b32 v15, s%d" % sT2)
    a("ds_write_b32 v12, v15 offset:%d" % (L_CNT + 16))
    for k in range(nsi, 16):
        ns_load(k, 3)
    a("s_waitcnt vmcnt(0)")
    wo_transpose()
    stamp("aux_w")
    is_consumer()
    a("s_cbranch_scc1 L_w0t")
    lds_wait(L_CNT + 12, 8, "g", 8, 9, 64)
    tag16(8, 15, 0)
    nibs(16, 8)
    a("v_lshrrev_b32 v8, 4, v%d" % vLane)
    a("v_and_b32 v9, 15, v%d" % vLane)
    a("v_mul_u32_u24 v8, 2304, v8")
    a("v_lshl_add_u32 v8, v9, 4, v8")
    a("s_mul_i32 s%d, s%d, %d" % (sT2, sB, 8 * 2304))
    a("s_add_u32 s%d, s%d, 0x%x" % (sT2, sT2, WS_MO))
    a("s_add_u32 s%d, s%d, %d" % (sT3, sT2, 4 * 2304))
    xfin_addr(10, 11)
    a("v_and_b32 v10, 7, v%d" % vLane)
    a("v_lshl_add_u32 v10, v10, 3, v11")
    a("v_bfe_u32 v11, v%d, 3, 1" % vLane)
    a("v_lshl_add_u32 v10, v11, 2, v10")
    a("v_lshlrev_b32 v10, 2, v10")
    a("s_mov_b32 s%d, 0" % sCNT)
    GB = 28
    a.label("L_gp")
    for u in range(9):
        a("buffer_load_dwordx4 v[%d:%d], v8, s[%d:%d], s%d offen offset:%d sc1" % (GB + 8 * u, GB + 8 * u + 3, rWS, rWS + 3, sT2, 256 * u))
        a("buffer_load_dwordx4 v[%d:%d], v8, s[%d:%d], s%d offen offset:%d sc1" % (GB + 8 * u + 4, GB + 8 * u + 7, rWS, rWS + 3, sT3, 256 * u))
    a("s_waitcnt vmcnt(0)")
    a("v_mov_b32 v24, 0")
    for u in range(9):
        for k in range(0, 4, 2):
            a("v_bitop3_b32 v25, v%d, v%d, v%d bitop3:0x7e" % (GB + 8 * u + k, GB + 8 * u + 4 + k, 16 + k))
            a("v_bitop3_b32 v26, v%d, v%d, v%d bitop3:0x7e" % (GB + 8 * u + k + 1, GB + 8 * u + 5 + k, 17 + k))
            a("v_or3_b32 v24, v24, v25, v26")
    a("v_and_b32 v24, 15, v24")
    a("v_cmp_ne_u32 vcc, 0, v24")
    a("s_cbranch_vccz L_gok" if not (nomlp or mno) else "s_branch L_gok")
    a("s_add_u32 s%d, s%d, 1" % (sCNT, sCNT))
    a("s_cmp_gt_u32 s%d, 0x40000" % sCNT)
    a("s_cbranch_scc1 L_fin")
    a("s_sleep 64")
    a("s_branch L_gp")
    a.label("L_gok")
    for u in range(9):
        g = GB + 8 * u
        for k in range(8):
            a("v_and_b32 v%d, -16, v%d" % (g + k, g + k))
        a("v_pk_add_f32 v[%d:%d], v[%d:%d], v[%d:%d]" % (g, g + 1, g, g + 1, g + 4, g + 5))
        a("v_pk_add_f32 v[%d:%d], v[%d:%d], v[%d:%d]" % (g + 2, g + 3, g + 2, g + 3, g + 6, g + 7))
        xreduce(g)
        rbf(g, g)
        silu(g + 1, g, g + 2)
        rbf(g + 1, g + 1)
        a("ds_write_b32 v10, v%d offset:%d" % (g + 1, L_G + 256 * u))
    stamp("aux_red")
    a.label("L_w0t")
    tail_prep("tw")
    a("s_setprio 3")
    a("s_branch L_tail")
    a.label("L_end")
    a("s_endpgm")
    body = a.finalize()
    out = HEADER
    out += "; @launch grid=(256,1,1) block=(768,1,1) lds=%d\n" % L_END
    out += '.amdgcn_target "amdgcn-amd-amdhsa--gfx950"\n.text\n.globl %s\n.p2align 8\n.type %s,@function\n' % (K, K)
    out += body
    out += '.section .rodata,"a"\n.p2align 6\n.amdhsa_kernel %s\n' % K
    out += "  .amdhsa_next_free_vgpr 168\n  .amdhsa_next_free_sgpr %d\n  .amdhsa_accum_offset 168\n" % (100 if (ts or RC or CC) else 72)
    out += "  .amdhsa_group_segment_fixed_size 0\n  .amdhsa_kernarg_size 96\n  .amdhsa_user_sgpr_count 2\n"
    out += "  .amdhsa_user_sgpr_kernarg_segment_ptr 1\n  .amdhsa_system_sgpr_workgroup_id_x 1\n.end_amdhsa_kernel\n"
    if ts: out += "; STAMPS " + ",".join(stampnames) + "\n"
    return out

if __name__ == "__main__":
    if len(sys.argv) > 1 and sys.argv[1].startswith("["):
        names = []
        for c in eval(sys.argv[1]):
            n = "k15_" + "_".join("%s%s" % (k, str(v).replace(" ", "").replace("(", "").replace(")", "").replace(",", "-")) for k, v in c.items()) + ".s"
            open(n, "w").write(gen(**c)); names.append(n)
        print(" ".join(names))
    else:
        kw = eval("dict(%s)" % (sys.argv[2] if len(sys.argv) > 2 else ""))
        open(sys.argv[1] if len(sys.argv) > 1 else "k.s", "w").write(gen(**kw))
```

```python
import sys
from asmlib import Asm
NAME = "recurrent_scan__mha_block_cached__glu_gated_swiglu__decode"
HEADER = open("cdna_kernels/%s.s.ref" % NAME).read().split("; Override launch")[0]

LOG2E = 0x3fb8aa3b
SCALE = 0x3db504f3
INV576 = 0x3ae38e39
EPS = 0x3727c5ac

L_QP = 0
L_OP = 2048
L_ST = 6144
L_CNT = 6208
L_G = 6272
L_OD = 8576
L_XD = 13184
L_ZX = 22400
L_P = L_ZX + 3 * 2048
PG = 528
L_QF = L_P + 8 * 4 * PG
L_END = L_QF + 256

WS_H = 1 << 20
WS_MO = (1 << 20) + (512 << 10)
WS_RT = 2 << 20
WS_TS = 4 << 20

def gen(LA=8, PLA=4, VT=10, pol="nt", wqpol="", wopol="", mpol="", ts=False, poll_sleep=1, nomlp=False,
        PR=37, early=(1, 2, 3, 8, 14, 20, 26, 32, 35, 36), prio=3, TW=(6, 6), TS=2, KW=(3, 3), VW=(3, 3), EW=6, EN=0, MW=3,
        ad=None, CW=None, nowo=False, nowq=False, mno='', hsleep=127, JROT=0, HD=0, V3=(2, 3, 6, 4200, 430, 200), VB=None, KB=None, PW2=None, PN=99, WQ0=8, RC=None, RT=None, WS0=44, WS1=124, KX=1, PH=None, wprio=0, NC=8, CC=(2, 3, 4, -40, 40, 33, 480, 435, 150, 3), NSET=1, stpol='sc1', PS=4, tprio=None, P0=0, PROBE=True, SEL=True, hs2=1, SMI=True, SW=4, NC2=0, WOPF=1, WQPF=0, PF=0, pfpol='', PFW=1):
    R = 16
    a = Asm()
    sX, sK, sV, sWQ, sWO, sW1, sW3, sW2, sOUT, sDBG, sWS = 4, 6, 8, 10, 12, 16, 18, 20, 22, 24, 26
    sWAVE = 3
    sB, sH, sBH = 28, 29, 30
    sT0, sT1, sT2, sT3 = 31, 32, 33, 34
    sCNT = 35
    rKV, rA, rB, rWS = 36, 40, 44, 48
    sVlo, sVhi = 52, 53
    sOFF = 54
    sWOFF = 55
    sM1, sM2 = 56, 58
    sSEL0, sSEL1 = 60, 61
    sTS = 62
    sTSB = 64
    sSLOT = 65
    sU, sUN, sWK = 66, 67, 68
    sXG, sJ = 69, 70
    sDL = 71
    sMS, sREF, sISR, sEO, sST0 = 14, 96, 15, 71, 17
    if RC or CC: V3 = None
    sRB, sMODE = 18, 19
    vLane, vOff16, vXf = 1, 2, 3
    vM = 4; vQ = 8; vS = 12; vAcc = 20; vA0 = 24; vA1 = 28; vP0 = 12; vP1 = 16
    vT = 24
    vPA, vPR, vPW, vWOA = 36, 37, 38, 39
    vRing = 40
    vW = 104
    stampnames = {}
    def stamp(tag):
        if not ts: return
        if tag not in stampnames: stampnames[tag] = len(stampnames)
        k = stampnames[tag]
        assert k < 24
        a("s_memrealtime s[%d:%d]" % (sTS, sTS + 1))
        a("s_waitcnt lgkmcnt(0)")
        a("s_mov_b32 s%d, s%d" % (72 + k, sTS))
    def stamp_flush():
        if not ts: return
        a("v_mov_b32 v23, s%d" % sTSB)
        a("s_mov_b64 exec, 1")
        for k in range(24):
            a("v_mov_b32 v22, s%d" % (72 + k))
            a("buffer_store_dword v22, v23, s[%d:%d], 0 offen offset:%d" % (rWS, rWS + 3, 4 * k))
        a("s_mov_b64 exec, -1")
    def srd_tail(r, nrec):
        if isinstance(nrec, int): a("s_mov_b32 s%d, 0x%x" % (r + 2, nrec))
        else: a(nrec % (r + 2))
        a("s_mov_b32 s%d, 0x20000" % (r + 3))
    def srd(r, base, nrec):
        a("s_mov_b32 s%d, s%d" % (r, base)); a("s_mov_b32 s%d, s%d" % (r + 1, base + 1))
        srd_tail(r, nrec)
    def srd_off(r, base, soff, nrec):
        a("s_add_u32 s%d, s%d, s%d" % (r, base, soff))
        a("s_addc_u32 s%d, s%d, 0" % (r + 1, base + 1))
        srd_tail(r, nrec)
    def wave_reduce(op, v, sdst):
        for r in (8, 4, 2, 1):
            a("%s_dpp v%d, v%d, v%d row_ror:%d row_mask:0xf bank_mask:0xf" % (op, v, v, v, r))
        a("%s_dpp v%d, v%d, v%d row_bcast:15 row_mask:0xa bank_mask:0xf" % (op, v, v, v))
        a("%s_dpp v%d, v%d, v%d row_bcast:31 row_mask:0xc bank_mask:0xf" % (op, v, v, v))
        a("v_readlane_b32 s%d, v%d, 63" % (sdst, v))
    def rbf(d, s):
        a("v_cvt_pk_bf16_f32 v%d, v%d, v%d" % (d, s, s))
        a("v_and_b32 v%d, 0xffff0000, v%d" % (d, d))
    def ln_scalars(vmean, vvar, vmb, vsd, vrs):
        rbf(vmb, vmean)
        rbf(vsd, vvar)
        a("v_add_f32 v%d, 0x%x, v%d" % (vsd, EPS, vsd))
        rbf(vsd, vsd)
        a("v_sqrt_f32 v%d, v%d" % (vsd, vsd))
        rbf(vsd, vsd)
        a("v_rcp_f32 v%d, v%d" % (vrs, vsd))
    def div1(d, n, vsd, vrs, t):
        a("v_mul_f32 v%d, v%d, v%d" % (d, n, vrs))
        a("v_fma_f32 v%d, -v%d, v%d, v%d" % (t, d, vsd, n))
        a("v_fma_f32 v%d, v%d, v%d, v%d" % (d, t, vrs, d))
    def silu(d, x, t):
        a("v_mul_f32 v%d, 0x%x, v%d" % (t, LOG2E | 0x80000000, x))
        a("v_exp_f32 v%d, v%d" % (t, t))
        a("v_add_f32 v%d, 1.0, v%d" % (t, t))
        a("v_rcp_f32 v%d, v%d" % (t, t))
        a("v_mul_f32 v%d, v%d, v%d" % (d, x, t))
    def mfma(D, A, B, zero):
        a("v_mfma_f32_16x16x32_bf16 v[%d:%d], v[%d:%d], v[%d:%d], %s" % (D, D + 3, A, A + 3, B, B + 3, "0" if zero else "v[%d:%d]" % (D, D + 3)))
    def make_masks(t0, t1):
        a("v_and_b32 v%d, 1, v%d" % (t0, vLane))
        a("v_lshlrev_b32 v%d, 4, v%d" % (t0, t0))
        a("v_mov_b32 v%d, 0xffff" % t1)
        a("v_lshlrev_b32 v%d, v%d, v%d" % (t0, t0, t1))
        a("v_bfe_u32 v%d, v%d, 1, 2" % (t1, vLane))
        for r in range(4):
            a("v_cmp_eq_u32 vcc, %d, v%d" % (r, t1))
            a("v_cndmask_b32 v%d, 0, v%d, vcc" % (vM + r, t0))
    def xfin_addr(d, t):
        a("v_lshrrev_b32 v%d, 4, v%d" % (t, vLane))
        a("v_bfrev_b32 v%d, v%d" % (t, t))
        a("v_lshrrev_b32 v%d, 30, v%d" % (t, t))
        a("v_and_b32 v%d, 15, v%d" % (d, vLane))
        a("v_lshl_add_u32 v%d, v%d, 2, v%d" % (d, d, t))
    def part_addr(d, t, sw):
        a("v_and_b32 v%d, 15, v%d" % (d, vLane))
        a("v_bfe_u32 v%d, v%d, 4, 1" % (t, vLane))
        a("v_lshlrev_b32 v%d, 5, v%d" % (d, d))
        a("v_lshl_add_u32 v%d, v%d, 4, v%d" % (d, t, d))
        a("s_lshl_b32 s%d, s%d, 9" % (sT2, sw))
        a("v_add_u32 v%d, s%d, v%d" % (d, sT2, d))
    def wo_setup(t):
        a("s_mul_i32 s%d, s%d, 0x%x" % (sT2, sH, 128 * 1152))
        a("s_lshl_b32 s%d, s%d, 7" % (sT3, sUN))
        a("s_add_u32 s%d, s%d, s%d" % (sT2, sT2, sT3))
        srd_off(rB, sWO, sT2, "s_sub_u32 s%%d, 0x%x, s%d" % (4096 * 1152, sT2))
        a("v_lshrrev_b32 v%d, 3, v%d" % (vWOA, vLane))
        a("v_and_b32 v%d, 7, v%d" % (t, vLane))
        a("v_mul_u32_u24 v%d, 0x%x, v%d" % (vWOA, 8 * 1152, vWOA))
        a("v_lshl_add_u32 v%d, v%d, 4, v%d" % (vWOA, t, vWOA))
        a("s_mov_b32 s%d, 0" % sWOFF)
    def wo_load(i):
        if nowo: a("s_mov_b32 s%d, 0x7fffffff" % sWOFF)
        a("buffer_load_dwordx4 v[%d:%d], v%d, s[%d:%d], s%d offen offset:%d %s" % (vW + 4 * i, vW + 4 * i + 3, vWOA, rB, rB + 3, sWOFF, (i % 2) * 1152, wopol))
        if i % 2 == 1 and i < 15: a("s_add_u32 s%d, s%d, %d" % (sWOFF, sWOFF, 2304 if i != 7 else 58 * 1152))
    def xf_load(t0, t1):
        xfin_addr(t0, t1)
        a("s_lshl_b32 s%d, s%d, 7" % (sT3, sUN))
        a("v_lshlrev_b32 v%d, 1, v%d" % (t0, t0))
        a("buffer_load_ushort v%d, v%d, s[%d:%d], s%d offen nt" % (vXf, t0, rA, rA + 3, sT3))
    def lds_wait(off, n, tag, va, vb, sleep=1):
        a("v_mov_b32 v%d, 0" % va)
        a.label("L_lw" + tag)
        a("ds_read_b32 v%d, v%d offset:%d" % (vb, va, off))
        a("s_waitcnt lgkmcnt(0)")
        a("v_readfirstlane_b32 s%d, v%d" % (sT2, vb))
        a("s_cmp_ge_u32 s%d, %d" % (sT2, n))
        a("s_cbranch_scc1 L_lg" + tag)
        a("s_sleep %d" % sleep)
        a("s_branch L_lw" + tag)
        a.label("L_lg" + tag)
    def lds_sig(off, va, vb):
        a("v_mov_b32 v%d, 0" % va); a("v_mov_b32 v%d, 1" % vb)
        a("s_mov_b64 exec, 1")
        a("ds_add_u32 v%d, v%d offset:%d" % (va, vb, off))
        a("s_mov_b64 exec, -1")
    def tag16(d, vn, bit):
        a("v_bfe_u32 v%d, v%d, %d, 1" % (d, vLane, bit))
        a("v_lshlrev_b32 v%d, 4, v%d" % (d, d))
        a("v_bfe_u32 v%d, v%d, v%d, 16" % (d, vn, d))
    def nibs(d, t16):
        for k in range(3, -1, -1):
            a("v_bfe_u32 v%d, v%d, %d, 4" % (d + k, t16, 4 * k))
    sPUB = 16
    def wo_transpose(hook=None):
        a("s_mov_b32 s%d, 0x05040100" % sSEL0)
        a("s_mov_b32 s%d, 0x07060302" % sSEL1)
        TQ = [88, 92, 96, 100, 8, 20, 24, 32]
        for t, dst in ((0, TQ), (1, [vW + 4 * j for j in range(8)])):
            if hook: hook()
            for j in range(8):
                for r in range(4):
                    s0 = vW + 32 * t + 4 * (2 * r + 1) + (j >> 1)
                    s1 = vW + 32 * t + 4 * (2 * r) + (j >> 1)
                    a("v_perm_b32 v%d, v%d, v%d, s%d" % (dst[j] + r, s0, s1, sSEL1 if j & 1 else sSEL0))
        for j in range(8):
            for r in range(4):
                a("v_mov_b32 v%d, v%d" % (vW + 32 + 4 * j + r, TQ[j] + r))
    def tail_prep(tag):
        lds_wait(L_CNT + 16, 1, tag, 38, 39, 4)
        tag16(0, 39, 4)
        a("v_lshlrev_b32 v38, 3, v%d" % vLane)
        a("v_and_b32 v3, 7, v%d" % vLane)
        a("v_lshrrev_b32 v39, 4, v%d" % vLane)
        a("v_lshlrev_b32 v3, 5, v3")
        a("v_lshl_add_u32 v3, v39, 4, v3")
        a("v_lshrrev_b32 v39, 3, v%d" % vLane)
        a("v_lshlrev_b32 v39, 4, v39")
        a("s_mul_i32 s%d, s%d, 2304" % (sPUB, sSLOT))
        a("s_lshl_b32 s%d, s%d, 8" % (sU, sUN))
        a("s_add_u32 s%d, s%d, s%d" % (sPUB, sPUB, sU))
        a("s_mov_b32 s%d, 0xffff0000" % sM1); a("s_mov_b32 s%d, 0xffff0000" % (sM1 + 1))
    def is_consumer():
        a("s_lshl2_add_u32 s%d, s%d, 3" % (sT2, sB))
        a("s_cmp_lg_u32 s%d, s%d" % (sH, sT2))
    def wo_prefetch():
        a("s_mul_i32 s%d, s%d, 0x%x" % (sT2, sH, 128 * 1152))
        a("s_mul_i32 s%d, s%d, 18432" % (sT3, sB))
        a("s_add_u32 s%d, s%d, s%d" % (sT2, sT2, sT3))
        srd_off(rB, sWO, sT2, 18432)
        a("v_lshlrev_b32 v71, 7, v%d" % vLane)
        for k in range(3):
            a("s_mov_b32 s%d, %d" % (sT3, 8192 * k))
            a("buffer_load_dword v70, v71, s[%d:%d], s%d offen %s" % (rB, rB + 3, sT3, pfpol))
    def common_setup():
        srd(rWS, sWS, 8 << 20)
        if ts:
            a("s_mul_i32 s%d, s2, 12" % sTSB); a("s_add_u32 s%d, s%d, s%d" % (sTSB, sTSB, sWAVE))
            a("s_lshl_b32 s%d, s%d, 7" % (sTSB, sTSB)); a("s_add_u32 s%d, s%d, 0x%x" % (sTSB, sTSB, WS_TS))

    K = NAME + "_kernel"
    a.label(K)
    a("s_cmp_ge_u32 s2, 256")
    a("s_cbranch_scc1 L_end")
    if ts:
        for k in range(24): a("s_mov_b32 s%d, 0" % (72 + k))
    stamp("start")
    a("s_load_dwordx16 s[4:19], s[0:1], 0")
    a("s_load_dwordx8 s[20:27], s[0:1], 64")
    if ad or V3 or RC or CC: a("s_memrealtime s[%d:%d]" % (sTS, sTS + 1))
    a("v_lshrrev_b32 v2, 6, v0")
    a("v_and_b32 v%d, 63, v0" % vLane)
    a("v_readfirstlane_b32 s%d, v2" % sWAVE)
    a("v_lshlrev_b32 v%d, 4, v%d" % (vOff16, vLane))
    a("s_and_b32 s%d, s2, 7" % sXG)
    a("s_lshr_b32 s%d, s2, 3" % sJ)
    a("s_and_b32 s%d, s%d, 3" % (sH, sJ))
    a("s_lshl2_add_u32 s%d, s%d, s%d" % (sH, sXG, sH))
    a("s_lshr_b32 s%d, s%d, 2" % (sB, sJ))
    a("s_lshl_b32 s%d, s%d, 5" % (sSLOT, sB))
    a("s_add_u32 s%d, s%d, s%d" % (sSLOT, sSLOT, sH))
    a("s_lshl_b32 s%d, s%d, 20" % (sBH, sSLOT))
    a("s_lshl_b32 s%d, s%d, 12" % (sOFF, sWAVE))
    a("s_mul_i32 s%d, s%d, 1152" % (sT0, sB))
    a("s_lshl_b32 s%d, s%d, 8" % (sT1, sH))
    a("s_min_u32 s%d, s%d, 8" % (sUN, sWAVE))
    a("s_cmp_ge_u32 s%d, 8" % sWAVE)
    a("s_cbranch_scc1 L_w")
    a("s_waitcnt lgkmcnt(0)")
    srd_off(rKV, sK, sBH, 1 << 20)
    if prio: a("s_setprio %d" % prio)
    cur = {"pol": pol}
    def issue(n, switch, reg=None):
        j = n % 4; r = vRing + 4 * (n % R) if reg is None else reg
        a("buffer_load_dwordx4 v[%d:%d], v%d, s[%d:%d], s%d offen offset:%d %s" % (r, r + 3, vOff16, rKV, rKV + 3, sOFF, j * 1024, cur['pol']))
        if j == 3:
            a("s_add_u32 s%d, s%d, 0x8000" % (sOFF, sOFF))
            if switch:
                a("s_cmp_ge_u32 s%d, 0x100000" % sOFF)
                a("s_cselect_b32 s%d, s%d, s%d" % (rKV, sVlo, rKV))
                a("s_cselect_b32 s%d, s%d, s%d" % (rKV + 1, sVhi, rKV + 1))
                a("s_and_b32 s%d, s%d, 0xfffff" % (sOFF, sOFF))
    lab = [0]
    def wait2(small, big):
        if small == big:
            a("s_waitcnt vmcnt(%d)" % small); return
        lab[0] += 1
        a("s_cbranch_vccnz L_wd%d" % lab[0])
        a("s_waitcnt vmcnt(%d)" % small)
        a.label("L_wd%d" % lab[0])
        a("s_waitcnt vmcnt(%d)" % big)
    extra = [12, 20, 4, 36]
    def preg(m):
        if PR == 32: return vRing + 4 * m
        if m == 0: return 16
        if m <= 16: return vRing + 4 * ((PR + m - 1) % 16)
        if m <= 32: return vW + 4 * (m - 17)
        return extra[m - 33]
    assert PR == 32 or 33 <= PR <= 37
    for n in range(PLA):
        issue(n, False, preg(n))
    a("s_barrier")
    stamp("issued")
    common_setup()
    if V3: a("s_add_u32 s%d, s%d, %d" % (sDL, sTS, V3[3]))
    if CC:
        a("s_mov_b32 s%d, s%d" % (sST0, sTS))
        a("s_cmp_eq_u32 s2, %d" % CC[5])
        a("s_cselect_b32 s%d, 1, 0" % sISR)
        a("s_mov_b32 s%d, 0" % sRB)
    if RC:
        a("s_mov_b32 s%d, s%d" % (sST0, sTS))
        a("s_mov_b32 s%d, 0" % sISR)
        for r_, wg in enumerate(RC[5]):
            a("s_cmp_eq_u32 s2, %d" % wg)
            a("s_cselect_b32 s%d, %d, s%d" % (sISR, r_ + 1, sISR))
    srd_off(rA, sX, sT0, 1160)
    a("s_add_u32 s%d, s%d, s%d" % (sVlo, sV, sBH)); a("s_addc_u32 s%d, s%d, 0" % (sVhi, sV + 1))
    a("s_mov_b32 s%d, 0xaaaaaaaa" % sM1); a("s_mov_b32 s%d, 0xaaaaaaaa" % (sM1 + 1))
    a("s_mov_b32 s%d, 0xcccccccc" % sM2); a("s_mov_b32 s%d, 0xcccccccc" % (sM2 + 1))
    a("v_and_b32 v0, 15, v%d" % vLane)
    a("v_lshlrev_b32 v0, 4, v0")
    if PH:
        a("s_cmp_lt_u32 s%d, %d" % (sWAVE, PH))
        a("s_cselect_b64 vcc, -1, 0")
    for n in range(PLA, PR):
        w = PLA if (PW2 is None or n < PN) else PW2
        if PH: wait2(w - 2, w - 1)
        else: a("s_waitcnt vmcnt(%d)" % (w - 1))
        issue(n, False, preg(n))
    stamp("preB1")
    if PF:
        a("v_lshlrev_b32 v35, 7, v%d" % vLane)
        a("v_mov_b32 v24, 0")
        a("s_mov_b32 s%d, s%d" % (sT0, sOFF))
        for k in range(PF):
            a("ds_read_b32 v25, v24 offset:%d" % (L_CNT + 20))
            a("s_waitcnt vmcnt(%d) lgkmcnt(0)" % (PFW - 1))
            a("v_readfirstlane_b32 s%d, v25" % sT2)
            a("s_cmp_ge_u32 s%d, 1" % sT2)
            a("s_cbranch_scc1 L_lgq")
            a("s_mov_b32 exec_hi, 0")
            a("buffer_load_dword v34, v35, s[%d:%d], s%d offen %s" % (rKV, rKV + 3, sT0, pfpol))
            a("s_mov_b32 exec_hi, -1")
            a("s_add_u32 s%d, s%d, 0x8000" % (sT0, sT0))
    lds_wait(L_CNT + 20, 1, "q", 24, 25)
    a("ds_read_b128 v[%d:%d], v0 offset:%d" % (vQ, vQ + 3, L_QF))
    a("s_waitcnt lgkmcnt(0)")
    stamp("q")
    vPa, vPb, vR0, vR1, vT0_, vT1_, vU0, vU1, vK, vSd = range(24, 34)
    def kcompute(n, r, sdst=None):
        P = vPa if n % 2 == 0 else vPb
        for d in range(4):
            a("v_dot2_f32_bf16 v%d, v%d, v%d, %s" % (P, r + d, vQ + d, "0" if d == 0 else "v%d" % P))
        if n % 2 == 1:
            Rr = vR0 if (n >> 1) % 2 == 0 else vR1
            a("v_add_f32_dpp v%d, v%d, v%d row_ror:8 row_mask:0xf bank_mask:0x3" % (Rr, vPa, vPa))
            a("v_add_f32_dpp v%d, v%d, v%d row_ror:8 row_mask:0xf bank_mask:0xc" % (Rr, vPb, vPb))
        if n % 4 == 3:
            Tt = vT0_ if (n >> 2) % 2 == 0 else vT1_
            a("v_add_f32_dpp v%d, v%d, v%d row_shl:4 row_mask:0xf bank_mask:0x5" % (Tt, vR0, vR0))
            a("v_add_f32_dpp v%d, v%d, v%d row_shr:4 row_mask:0xf bank_mask:0xa" % (Tt, vR1, vR1))
        if n % 8 == 7:
            U = vU0 if (n >> 3) == 0 else vU1
            a("v_cndmask_b32 v%d, v%d, v%d, s[%d:%d]" % (vK, vT0_, vT1_, sM2, sM2 + 1))
            a("v_cndmask_b32 v%d, v%d, v%d, s[%d:%d]" % (vSd, vT1_, vT0_, sM2, sM2 + 1))
            a("v_add_f32_dpp v%d, v%d, v%d quad_perm:[2,3,0,1] row_mask:0xf bank_mask:0xf" % (U, vSd, vK))
        if n == 15:
            a("v_cndmask_b32 v%d, v%d, v%d, s[%d:%d]" % (vK, vU0, vU1, sM1, sM1 + 1))
            a("v_cndmask_b32 v%d, v%d, v%d, s[%d:%d]" % (vSd, vU1, vU0, sM1, sM1 + 1))
            if sdst is None:
                for t in range(7):
                    a("v_mov_b32 v%d, v%d" % (vS + t, vS + t + 1))
            a("v_add_f32_dpp v%d, v%d, v%d quad_perm:[1,0,3,2] row_mask:0xf bank_mask:0xf" % (vK, vSd, vK))
            rbf(vK, vK)
            a("v_mul_f32 v%d, 0x%x, v%d" % (vK, SCALE, vK))
            rbf(vS + 7 if sdst is None else sdst, vK)
    def sreg(g): return (16, 17, 18, 19, 12, 13, 14, 15)[g]
    early = list(early)[:LA]
    assert len(early) == LA
    issued_new = 0
    PMAX = max(PLA, PW2 or 0)
    consumed = set()
    for m in range(PR):
        cnt = PR - 1 - m + issued_new
        if cnt < PMAX + LA:
            a("s_waitcnt vmcnt(%d)" % cnt)
        kcompute(m % 16, preg(m), sreg(m // 16))
        consumed.add(preg(m))
        if m in early:
            assert vRing + 4 * ((PR + issued_new) % 16) in consumed
            issue(PR + issued_new, True); issued_new += 1
    assert issued_new == LA
    stamp("backlog")
    make_masks(34, 35)
    part_addr(vPA, 34, sWAVE)
    wo_setup(34)
    a("v_lshrrev_b32 v34, 4, v%d" % vLane)
    a("v_mul_u32_u24 v%d, %d, v34" % (vPR, PG))
    a("s_mul_i32 s%d, s%d, %d" % (sT2, sWAVE, 4 * PG))
    a("v_add_u32 v%d, s%d, v%d" % (vPR, sT2, vPR))
    a("v_bfrev_b32 v34, v%d" % vLane)
    a("v_lshrrev_b32 v34, 26, v34")
    a("v_and_b32 v34, 60, v34")
    a("v_add_u32 v%d, v%d, v34" % (vPW, vPR))
    def set_class():
        a("s_cmp_lt_u32 s2, 72")
        a("s_cselect_b64 vcc, -1, 0")
    def adapt():
        a("s_waitcnt lgkmcnt(0)")
        a("s_sub_u32 s%d, s%d, s%d" % (sT2, sTS, sDL))
        a("s_cmp_gt_i32 s%d, 0" % sT2)
        a("s_cselect_b64 vcc, -1, 0")
        a("s_add_u32 s%d, s%d, %d" % (sDL, sDL, ad[1]))
    set_class()
    def publish(tag):
        a("s_cmp_eq_u32 s%d, 0" % sISR)
        a("s_cbranch_scc1 L_np%s" % tag)
        a("s_cmp_lg_u32 s%d, 0" % sWAVE)
        a("s_cbranch_scc1 L_np%s" % tag)
        a("s_lshl2_add_u32 s%d, s%d, s%d" % (sT2, sISR, sEO))
        a("s_sub_u32 s%d, s%d, 4" % (sT2, sT2))
        a("s_mov_b32 s%d, s%d" % (sT3, sMS))
        a("s_atomic_swap s%d, s[%d:%d], s%d" % (sT3, sWS, sWS + 1, sT2))
        a.label("L_np%s" % tag)
    def refload():
        a("s_load_dwordx4 s[%d:%d], s[%d:%d], s%d" % (sREF, sREF + 3, sWS, sWS + 1, sEO))
    if RC or CC: a("s_mov_b32 s%d, 0x%x" % (sEO, WS_RT))
    def wait3(f):
        c = [f(CC[0]), f(CC[1]), f(CC[2])]
        lab[0] += 1
        if c[1] != c[2]: a("s_cbranch_vccnz L_wb%d" % lab[0])
        if c[0] != c[1]:
            a("s_cmp_lg_u32 s%d, 0" % sMODE)
            a("s_cbranch_scc1 L_wm%d" % lab[0])
            a("s_waitcnt vmcnt(%d)" % c[0])
            a.label("L_wm%d" % lab[0])
        a("s_waitcnt vmcnt(%d)" % c[1])
        if c[1] != c[2]:
            a.label("L_wb%d" % lab[0])
            a("s_waitcnt vmcnt(%d)" % c[2])
    def cload():
        a("s_sub_u32 s%d, s%d, 256" % (sT2, sEO))
        a("s_load_dword s%d, s[%d:%d], s%d" % (sREF, sWS, sWS + 1, sT2))
    def ctl(step, fresh, tag):
        lab[0] += 1
        a("s_cmp_lg_u32 s%d, 0" % sRB)
        a("s_cselect_b32 s%d, %s, 0" % (sT2, step))
        a("s_add_u32 s%d, s%d, s%d" % (sRB, sRB, sT2))
        if fresh is not None:
            a("s_sub_u32 s%d, s%d, s%d" % (sT3, sREF, sST0))
            a("s_add_u32 s%d, s%d, %s" % (sT2, sREF, fresh))
            a("s_cmp_lt_u32 s%d, 0x8000" % sT3)
            a("s_cselect_b32 s%d, s%d, s%d" % (sRB, sT2, sRB))
        a("s_sub_u32 s%d, s%d, s%d" % (sT2, sTS, sRB))
        a("s_cmp_eq_u32 s%d, 0" % sRB)
        a("s_cselect_b32 s%d, 0, s%d" % (sT2, sT2))
        a("s_cmp_lg_u32 s%d, 0" % sISR)
        a("s_cselect_b32 s%d, 0, s%d" % (sT2, sT2))
        a("s_cmp_gt_i32 s%d, %d" % (sT2, CC[4]))
        a("s_cselect_b64 vcc, -1, 0")
        a("s_cmp_gt_i32 s%d, %d" % (sT2, CC[3]))
        a("s_cselect_b32 s%d, 1, 0" % sMODE)
    if CC:
        a("s_mov_b64 vcc, 0")
        a("s_mov_b32 s%d, 1" % sMODE)
    ops = ["K%d" % i for i in range(PR, PR + LA)]
    wosteps = [WS0 + ((WS1 - WS0) * k) // 16 for k in range(16)]
    wi = 0
    for m in range(PR, 128):
        if m == 64: stamp("trk")
        if RC and m == 111: a("s_memrealtime s[%d:%d]" % (sTS, sTS + 1))
        if RC and m == 112:
            a("s_waitcnt lgkmcnt(0)")
            a("s_mov_b32 s%d, s%d" % (sMS, sTS))
            publish("k")
        if RC and m == 121: refload()
        if CC:
            G0 = CC[9]; TK = CC[6]
            if m >= 16 * G0 - 1:
                if m % 8 == 7: a("s_memrealtime s[%d:%d]" % (sTS, sTS + 1))
                if m % 8 == 0:
                    a("s_waitcnt lgkmcnt(0)")
                    if m % 16 == 0:
                        if m > 16 * G0: ctl(str(TK // 2), None, "")
                        a("s_mov_b32 s%d, s%d" % (sMS, sTS))
                        publish("k%d" % m)
                        if m > 16 * G0: cload()
                        a("s_add_u32 s%d, s%d, 256" % (sEO, sEO))
                    elif m > 16 * G0 + 8:
                        ctl(str(TK // 2), str(TK + TK // 2), "")
        req = len(ops) - 1 - ops.index("K%d" % m)
        def allowed(w):
            k = 0; n_ = 0
            for o in reversed(ops):
                if o != "W":
                    if k == w - 1: break
                    k += 1
                elif not KX:
                    if k == w - 1: break
                    k += 1; n_ -= 0
                n_ += 1
            return min(req, n_)
        if CC and m >= 16 * CC[9] + 24: wait3(allowed)
        else: wait2(allowed(KW[0]), allowed(KW[0]))
        if m in wosteps:
            wo_load(wi); ops.append("W"); wi += 1
        issue(m + LA, True); ops.append("K%d" % (m + LA))
        kcompute(m % 16, vRing + 4 * (m % 16), sreg(m // 16))
    assert wi == 16 and max(wosteps) <= 127 - LA
    vnext = [LA]
    def vhook():
        if SMI and vnext[0] < 16:
            a("s_waitcnt vmcnt(%d)" % (SW - 1))
            issue(vnext[0], False); vnext[0] += 1
    if not SMI:
        for n in range(LA, VT):
            issue(n, False)
    stamp("kdone")
    vhook()
    vm = vT
    a("v_max3_f32 v%d, v%d, v%d, v%d" % (vm, vS, vS + 1, vS + 2))
    a("v_max3_f32 v%d, v%d, v%d, v%d" % (vm, vm, vS + 3, vS + 4))
    a("v_max3_f32 v%d, v%d, v%d, v%d" % (vm, vm, vS + 5, vS + 6))
    a("v_max_f32 v%d, v%d, v%d" % (vm, vm, vS + 7))
    wave_reduce("v_max_f32", vm, sT2)
    vhook()
    for t in range(8):
        a("v_subrev_f32 v%d, s%d, v%d" % (vT + 2 + t, sT2, vS + t))
    for t in range(8):
        a("v_mul_f32 v%d, 0x%x, v%d" % (vT + 2 + t, LOG2E, vT + 2 + t))
    for t in range(8):
        a("v_exp_f32 v%d, v%d" % (vT + 2 + t, vT + 2 + t))
    a("v_add_f32 v%d, v%d, v%d" % (vT + 1, vT + 2, vT + 3))
    for t in range(2, 8):
        a("v_add_f32 v%d, v%d, v%d" % (vT + 1, vT + 1, vT + 2 + t))
    wave_reduce("v_add_f32", vT + 1, sT3)
    a("v_mov_b32 v%d, s%d" % (vT + 2, sT2)); a("v_mov_b32 v%d, s%d" % (vT + 3, sT3))
    a("s_lshl_b32 s%d, s%d, 3" % (sT2, sWAVE))
    a("v_mov_b32 v%d, s%d" % (vT + 4, sT2))
    a("v_mov_b32 v%d, 0" % (vT + 6)); a("v_mov_b32 v%d, 1" % (vT + 7))
    a("s_mov_b64 exec, 1")
    a("ds_write_b64 v%d, v[%d:%d] offset:%d" % (vT + 4, vT + 2, vT + 3, L_ST))
    a("ds_add_u32 v%d, v%d offset:%d" % (vT + 6, vT + 7, L_CNT + 12))
    a("s_mov_b64 exec, -1")
    a("v_and_b32 v%d, 7, v%d" % (vT + 5, vLane))
    a("v_lshlrev_b32 v%d, 3, v%d" % (vT + 5, vT + 5))
    assert vnext[0] + 2 <= 12 and VT <= 12
    wo_transpose(vhook)
    vhook()
    lds_wait(L_CNT + 12, 8, "sm", vT + 6, vT + 7, 0)
    stamp("B2")
    vhook()
    a("ds_read_b64 v[%d:%d], v%d offset:%d" % (vT + 2, vT + 3, vT + 5, L_ST))
    a("s_waitcnt lgkmcnt(0)")
    vMx = vT + 4
    a("v_max_f32_dpp v%d, v%d, v%d row_ror:4 row_mask:0xf bank_mask:0xf" % (vMx, vT + 2, vT + 2))
    a("v_max_f32_dpp v%d, v%d, v%d row_ror:2 row_mask:0xf bank_mask:0xf" % (vMx, vMx, vMx))
    a("v_max_f32_dpp v%d, v%d, v%d row_ror:1 row_mask:0xf bank_mask:0xf" % (vMx, vMx, vMx))
    a("v_sub_f32 v%d, v%d, v%d" % (vT + 2, vT + 2, vMx))
    for t in range(8):
        a("v_sub_f32 v%d, v%d, v%d" % (vS + t, vS + t, vMx))
    a("v_mul_f32 v%d, 0x%x, v%d" % (vT + 2, LOG2E, vT + 2))
    for t in range(8):
        a("v_mul_f32 v%d, 0x%x, v%d" % (vS + t, LOG2E, vS + t))
    a("v_exp_f32 v%d, v%d" % (vT + 2, vT + 2))
    for t in range(8):
        a("v_exp_f32 v%d, v%d" % (vS + t, vS + t))
    a("v_mul_f32 v%d, v%d, v%d" % (vT + 2, vT + 2, vT + 3))
    for r in (4, 2, 1):
        a("v_add_f32_dpp v%d, v%d, v%d row_ror:%d row_mask:0xf bank_mask:0xf" % (vT + 2, vT + 2, vT + 2, r))
    vhook()
    a("v_rcp_f32 v%d, v%d" % (vT + 3, vT + 2))
    for t in range(8):
        div1(vT + 4, sreg(t), vT + 2, vT + 3, vT + 5)
        a("v_cvt_pk_bf16_f32 v%d, v%d, v%d" % (vT + 6 + (t % 2), vT + 4, vT + 4))
        a("ds_write_b32 v%d, v%d offset:%d" % (vPW, vT + 6 + (t % 2), L_P + 64 * t))
    if not (RC or CC): a("ds_read_b128 v[%d:%d], v%d offset:%d" % (vP0, vP0 + 3, vPR, L_P))
    for r in range(4):
        a("v_mov_b32 v%d, 0" % (vAcc + r))
    vhook()
    tail_prep("ta")
    if SMI: VT = vnext[0]
    stamp("sm")
    if CW:
        a("s_cmp_eq_u32 s%d, 31" % sH)
        a("s_cselect_b64 s[%d:%d], -1, 0" % (sM1, sM1 + 1))
        a("s_or_b64 vcc, vcc, s[%d:%d]" % (sM1, sM1 + 1))
    a("s_mov_b32 s%d, 0" % sCNT)
    if ad: a("s_memrealtime s[%d:%d]" % (sTS, sTS + 1))
    def vbody(first_skip, w, tagname):
        for n in range(16):
            Pc = vP0 if (n >> 2) % 2 == 0 else vP1
            Pn = vP1 if (n >> 2) % 2 == 0 else vP0
            if CC and n == 8:
                a("s_waitcnt lgkmcnt(0)")
                ctl(str(CC[7] // 2), "s%d" % sT0, "")
            if RC or CC:
                Pc = (8, 12, 16, 32)[n >> 2]
            elif n % 4 == 0:
                a("s_waitcnt lgkmcnt(0)")
                a("ds_read_b128 v[%d:%d], v%d offset:%d" % (Pn, Pn + 3, vPR, L_P + 4 * n + 16))
            A = vA0 if n % 2 == 0 else vA1
            for r in range(4):
                a("v_and_b32 v%d, v%d, v%d" % (A + r, Pc + (n % 4), vM + r))
            if CC: wait3(lambda w_: w_ - 1)
            else: wait2(w[0] - 1, w[1] - 1)
            if first_skip and n < VT - LA:
                a("s_cmp_eq_u32 s%d, 0" % sCNT)
                a("s_cbranch_scc1 L_vsk%s%d" % (tagname, n))
            issue(n + LA, False)
            if first_skip and n < VT - LA:
                a.label("L_vsk%s%d" % (tagname, n))
            if CC and n in (7, 15): a("s_memrealtime s[%d:%d]" % (sTS, sTS + 1))
            if RC and n == 9: refload()
            if (ad or V3 or RC) and n == 14: a("s_memrealtime s[%d:%d]" % (sTS, sTS + 1))
            mfma(vAcc, A, vRing + 4 * (n % R), False)
        a("v_add_u32 v%d, 64, v%d" % (vPR, vPR))
        a("s_add_u32 s%d, s%d, 1" % (sCNT, sCNT))
    if VB:
        a("s_cmp_ge_u32 s%d, %d" % (sB, VB[0]))
        a("s_cbranch_scc0 L_vA")
        a("s_cmp_lt_u32 s%d, %d" % (sB, VB[1]))
        a("s_cbranch_scc0 L_vA")
        cur["pol"] = ""
        a.label("L_vB")
        vbody(True, VW, "x")
        a("s_cmp_lt_u32 s%d, 8" % sCNT)
        a("s_cbranch_scc1 L_vB")
        a("s_branch L_vE")
        cur["pol"] = pol
        a.label("L_vA")
        vbody(True, VW, "y")
        a("s_cmp_lt_u32 s%d, 8" % sCNT)
        a("s_cbranch_scc1 L_vA")
        a.label("L_vE")
    elif CC:
        a("s_memrealtime s[%d:%d]" % (sTS, sTS + 1))
        a("s_mov_b32 s%d, %d" % (sT1, CC[6] // 2 + CC[8]))
        a("s_mov_b32 s%d, %d" % (sT0, CC[6] + CC[8] + CC[7] // 2))
        a.label("L_vloop")
        for k, pr in enumerate((8, 12, 16, 32)):
            a("ds_read_b128 v[%d:%d], v%d offset:%d" % (pr, pr + 3, vPR, L_P + 16 * k))
        a("s_waitcnt lgkmcnt(0)")
        ctl("s%d" % sT1, None, "")
        a("s_mov_b32 s%d, s%d" % (sMS, sTS))
        a("s_cmp_eq_u32 s%d, 7" % sCNT)
        a("s_cbranch_scc1 L_npv")
        publish("v")
        cload()
        a("s_add_u32 s%d, s%d, 256" % (sEO, sEO))
        vbody(True, None, "c")
        a("s_mov_b32 s%d, %d" % (sT1, CC[7] // 2))
        a("s_mov_b32 s%d, %d" % (sT0, CC[7] + CC[7] // 2))
        a("s_cmp_lt_u32 s%d, 8" % sCNT)
        a("s_cbranch_scc1 L_vloop")
    elif RC:
        a("s_memrealtime s[%d:%d]" % (sTS, sTS + 1))
        a.label("L_vloop")
        a("s_cmp_ge_u32 s%d, 8" % sCNT)
        a("s_cbranch_scc1 L_vend")
        for k, pr in enumerate((8, 12, 16, 32)):
            a("ds_read_b128 v[%d:%d], v%d offset:%d" % (pr, pr + 3, vPR, L_P + 16 * k))
        a("s_waitcnt lgkmcnt(0)")
        a("s_mov_b32 s%d, -100000" % sT0)
        if RT:
            a("s_cmp_eq_u32 s%d, 0" % sCNT)
            a("s_cselect_b32 s%d, %d, %d" % (sMS, RT[0], RT[1])) if False else None
            a("s_mov_b32 s%d, %d" % (sMS, RT[1]))
            a("s_cselect_b32 s%d, %d, s%d" % (sMS, RT[0], sMS))
            a("s_sub_u32 s%d, s%d, s%d" % (sMS, sTS, sMS))
        for r_ in range(len(RC[5])):
            a("s_sub_u32 s%d, s%d, s%d" % (sT2, sMS, sREF + r_))
            a("s_sub_u32 s%d, s%d, s%d" % (sT3, sREF + r_, sST0))
            a("s_cmp_ge_u32 s%d, 0x100000" % sT3)
            a("s_cselect_b32 s%d, s%d, s%d" % (sT2, sT0, sT2))
            a("s_max_i32 s%d, s%d, s%d" % (sT0, sT0, sT2))
        a("s_mov_b32 s%d, s%d" % (sMS, sTS))
        a("s_add_u32 s%d, s%d, 256" % (sEO, sEO))
        a("s_cmp_eq_u32 s%d, 7" % sCNT)
        a("s_cbranch_scc1 L_npv")
        publish("v")
        a("s_cmp_lg_u32 s%d, 0" % sISR)
        a("s_cbranch_scc1 L_vmid")
        a("s_cmp_gt_i32 s%d, %d" % (sT0, RC[4]))
        a("s_cbranch_scc1 L_vbig")
        a("s_cmp_gt_i32 s%d, %d" % (sT0, RC[3]))
        a("s_cbranch_scc1 L_vmid")
        vbody(True, (RC[0], RC[0]), "s")
        a("s_branch L_vloop")
        a.label("L_vmid")
        vbody(True, (RC[1], RC[1]), "m")
        a("s_branch L_vloop")
        a.label("L_vbig")
        vbody(True, (RC[2], RC[2]), "b")
        a("s_branch L_vloop")
        a.label("L_vend")
    elif V3:
        a("s_memrealtime s[%d:%d]" % (sTS, sTS + 1))
        if V3[3] == 0:
            a("s_waitcnt lgkmcnt(0)")
            a("s_sub_u32 s%d, s%d, 1" % (sDL, sTS))
        a.label("L_vloop")
        a("s_cmp_ge_u32 s%d, 8" % sCNT)
        a("s_cbranch_scc1 L_vend")
        a("s_waitcnt lgkmcnt(0)")
        a("s_sub_u32 s%d, s%d, s%d" % (sT2, sTS, sDL))
        a("s_add_u32 s%d, s%d, %d" % (sDL, sDL, V3[4]))
        a("s_cmp_gt_i32 s%d, %d" % (sT2, V3[5]))
        a("s_cbranch_scc1 L_vbig")
        a("s_cmp_gt_i32 s%d, 0" % sT2)
        a("s_cbranch_scc1 L_vmid")
        vbody(True, (V3[0], V3[0]), "s")
        a("s_branch L_vloop")
        a.label("L_vmid")
        vbody(True, (V3[1], V3[1]), "m")
        a("s_branch L_vloop")
        a.label("L_vbig")
        vbody(True, (V3[2], V3[2]), "b")
        a("s_branch L_vloop")
        a.label("L_vend")
    else:
        a.label("L_vloop")
        if ad: adapt()
        vbody(True, VW, "a")
        a("s_cmp_lt_u32 s%d, %d" % (sCNT, 8 - EN))
        a("s_cbranch_scc1 L_vloop")
        if EN:
            a.label("L_vloop2")
            vbody(False, (EW, EW), "b")
            a("s_cmp_lt_u32 s%d, 8" % sCNT)
            a("s_cbranch_scc1 L_vloop2")
    a("s_waitcnt lgkmcnt(0)")
    a("ds_write_b128 v%d, v[%d:%d] offset:%d" % (vPA, vAcc, vAcc + 3, L_OP))
    if tprio is not None: a("s_setprio %d" % tprio)
    stamp("vdone")
    a.label("L_tail")
    a("s_waitcnt lgkmcnt(0)")
    a("s_barrier")
    stamp("B3")
    for w in range(8):
        a("ds_read_b64 v[%d:%d], v38 offset:%d" % (8 + 2 * w, 9 + 2 * w, L_OP + 512 * w))
    a("s_waitcnt lgkmcnt(4)")
    a("v_pk_add_f32 v[8:9], v[8:9], v[10:11]")
    a("v_pk_add_f32 v[12:13], v[12:13], v[14:15]")
    a("s_waitcnt lgkmcnt(0)")
    a("v_pk_add_f32 v[16:17], v[16:17], v[18:19]")
    a("v_pk_add_f32 v[20:21], v[20:21], v[22:23]")
    a("v_pk_add_f32 v[8:9], v[8:9], v[12:13]")
    a("v_pk_add_f32 v[16:17], v[16:17], v[20:21]")
    a("v_pk_add_f32 v[8:9], v[8:9], v[16:17]")
    a("v_cvt_pk_bf16_f32 v8, v8, v9")
    for k in range(8):
        a("ds_bpermute_b32 v%d, v39, v8 offset:%d" % (24 + k, 128 * (k >> 2) + 4 * (k & 3)))
    vNB = 16
    nibs(vNB, 0)
    vD = 72
    a("s_waitcnt lgkmcnt(4)")
    for j in range(8):
        mfma(vD + 4 * j, 24, vW + 32 + 4 * j, True)
    a("s_waitcnt lgkmcnt(0)")
    for j in (0, 4, 1, 5, 2, 6, 3, 7):
        mfma(vD + 4 * j, 28, vW + 4 * j, False)
    for e in range(4):
        a("v_cndmask_b32 v%d, v%d, v%d, s[%d:%d]" % (20 + e, vD + 4 * e, vD + 4 * (e + 4), sM1, sM1 + 1))
    for e in range(4):
        a("v_permlane32_swap_b32 v%d, v%d" % (20 + e, 12 + e))
    for e in range(4):
        a("v_add_f32_dpp v%d, v%d, v%d row_shl:8 row_mask:0xf bank_mask:0x3" % (20 + e, 12 + e, 20 + e))
    for e in range(4):
        a("v_bfi_b32 v%d, 15, v%d, v%d" % (20 + e, vNB + e, 20 + e))
    a("s_mov_b64 exec, 0x00ff00ff")
    a("buffer_store_dwordx4 v[20:23], v3, s[%d:%d], s%d offen %s" % (rWS, rWS + 3, sPUB, stpol))
    a("s_mov_b64 exec, -1")
    stamp("pub")
    is_consumer()
    a("s_cbranch_scc1 L_fin")
    t0, t1, t4, t5, t6 = 8, 9, 12, 13, 14
    SETS = [40, 104, 136][:NSET]
    a("v_lshrrev_b32 v%d, 4, v%d" % (t0, vLane))
    a("v_and_b32 v%d, 15, v%d" % (t1, vLane))
    a("v_mul_u32_u24 v%d, 2304, v%d" % (t0, t0))
    a("v_lshl_add_u32 v%d, v%d, 4, v%d" % (t0, t1, t0))
    a("s_mul_i32 s%d, s%d, %d" % (sT2, sB, 32 * 2304))
    a("s_add_u32 s%d, s%d, s%d" % (sT2, sT2, sU))
    def gather_issue(G):
        a("s_mov_b32 s%d, s%d" % (sT3, sT2))
        for i in range(8):
            a("buffer_load_dwordx4 v[%d:%d], v%d, s[%d:%d], s%d offen sc1" % (G + 4 * i, G + 3 + 4 * i, t0, rWS, rWS + 3, sT3))
            if i < 7: a("s_add_u32 s%d, s%d, %d" % (sT3, sT3, 4 * 2304))
    xfin_addr(t4, t5)
    a("v_lshlrev_b32 v%d, 2, v%d" % (t5, t4))
    a("v_lshlrev_b32 v%d, 1, v%d" % (t4, t4))
    a("s_lshl_b32 s%d, s%d, 7" % (sT1, sUN))
    a("buffer_load_ushort v%d, v%d, s[%d:%d], s%d offen" % (vXf, t4, rA, rA + 3, sT1))
    if P0: a("s_sleep %d" % P0)
    gather_issue(SETS[0])
    a("v_add_u32 v%d, s%d, v%d" % (t5, sU, t5))
    a("ds_read_b32 v%d, v%d offset:%d" % (t6, t5, L_G))
    a("v_mov_b32 v10, 0")
    a("ds_read_b32 v15, v10 offset:%d" % (L_CNT + 16))
    a("s_mul_i32 s%d, s%d, 1152" % (sT0, sB))
    srd_off(rB, sOUT, sT0, 1160)
    a("s_mov_b32 s%d, 0" % sCNT)
    a("s_waitcnt lgkmcnt(0)")
    tag16(t5, 15, 0)
    nibs(vNB, t5)
    for G in SETS[1:]:
        a("s_sleep %d" % (10 // NSET))
        gather_issue(G)
    a.label("L_poll")
    for si, G in enumerate(SETS):
        a("s_waitcnt vmcnt(%d)" % (8 * (NSET - 1)))
        for k in range(4):
            for i in range(0, 8, 2):
                a("v_bitop3_b32 v%d, v%d, v%d, v%d bitop3:0x7e" % (24 + 4 * k + i // 2, G + 4 * i + k, G + 4 * i + 4 + k, vNB + k))
        for p_ in range(4):
            a("v_or3_b32 v%d, v%d, v%d, v%d" % (24 + p_, 24 + p_, 28 + p_, 32 + p_))
        for p_ in range(4):
            a("v_or_b32 v%d, v%d, v%d" % (24 + p_, 24 + p_, 36 + p_))
        a("v_or3_b32 v28, v24, v25, v26")
        a("v_or_b32 v28, v28, v27")
        a("v_and_b32 v28, 15, v28")
        a("v_cmp_ne_u32 vcc, 0, v28")
        a("s_cbranch_vccz L_got%d" % si)
        if PS: a("s_sleep %d" % PS)
        if not SEL:
            gather_issue(G)
        else:
            for p_ in range(4):
                a("v_and_b32 v28, 15, v%d" % (24 + p_))
                a("v_cmp_ne_u32 vcc, 0, v28")
                a("s_add_u32 s%d, s%d, %d" % (sT3, sT2, 8 * 2304 * p_))
                a("s_cbranch_vccz L_sk%d%d" % (si, p_))
                a("buffer_load_dwordx4 v[%d:%d], v%d, s[%d:%d], s%d offen sc1" % (G + 8 * p_, G + 8 * p_ + 3, t0, rWS, rWS + 3, sT3))
                a("s_add_u32 s%d, s%d, %d" % (sT3, sT3, 4 * 2304))
                a("buffer_load_dwordx4 v[%d:%d], v%d, s[%d:%d], s%d offen sc1" % (G + 8 * p_ + 4, G + 8 * p_ + 7, t0, rWS, rWS + 3, sT3))
                a.label("L_sk%d%d" % (si, p_))
    a("s_add_u32 s%d, s%d, 1" % (sCNT, sCNT))
    a("s_cmp_lt_u32 s%d, 0x100000" % sCNT)
    a("s_cbranch_scc1 L_poll")
    a("s_branch L_fin")
    def xreduce(g):
        a("v_permlane32_swap_b32 v%d, v%d" % (g, g + 1))
        a("v_permlane32_swap_b32 v%d, v%d" % (g + 2, g + 3))
        a("v_add_f32 v%d, v%d, v%d" % (g, g, g + 1))
        a("v_add_f32 v%d, v%d, v%d" % (g + 2, g + 2, g + 3))
        a("v_permlane16_swap_b32 v%d, v%d" % (g, g + 2))
        a("v_add_f32 v%d, v%d, v%d" % (g, g, g + 2))
    for si, G in reversed(list(enumerate(SETS))):
        a.label("L_got%d" % si)
        for k in range(32):
            a("v_and_b32 v%d, -16, v%d" % (G + k, G + k))
        for st in (16, 8, 4):
            for k in range(0, st, 2):
                d = G + k if st > 4 else 24 + k
                a("v_pk_add_f32 v[%d:%d], v[%d:%d], v[%d:%d]" % (d, d + 1, G + k, G + 1 + k, G + k + st, G + 1 + k + st))
        if si > 0: a("s_branch L_fsum")
    a.label("L_fsum")
    G = 24
    xreduce(G)
    a("v_lshlrev_b32 v%d, 16, v%d" % (vXf, vXf))
    rbf(G, G)
    a("v_mul_f32 v%d, v%d, v%d" % (G, G, t6))
    rbf(G, G)
    a("v_add_f32 v%d, v%d, v%d" % (G, G, vXf))
    a("v_cvt_pk_bf16_f32 v%d, v%d, v%d" % (G, G, G))
    a("buffer_store_short v%d, v%d, s[%d:%d], s%d offen" % (G, t4, rB, rB + 3, sT1))
    stamp("fin")
    a.label("L_fin")
    stamp_flush()
    a("s_endpgm")
    a.label("L_w")
    if wprio: a("s_setprio %d" % wprio)
    a("s_sub_u32 s%d, s%d, 8" % (sWK, sWAVE))
    a("v_mov_b32 v8, 0"); a("v_mov_b32 v9, 0"); a("v_mov_b32 v10, 0"); a("v_mov_b32 v11, 0")
    a("ds_write_b128 v8, v[8:11] offset:%d" % L_CNT)
    a("ds_write_b128 v8, v[8:11] offset:%d" % (L_CNT + 16))
    a("v_lshlrev_b32 v0, 1, v%d" % vLane)
    a("v_lshrrev_b32 v21, 4, v%d" % vLane)
    a("v_and_b32 v22, 15, v%d" % vLane)
    a("v_mul_u32_u24 v3, 0x%x, v21" % (36 * 8192))
    a("v_lshl_add_u32 v3, v22, 4, v3")
    a("s_mul_i32 s%d, s%d, 0x%x" % (sT2, sWK, 144 * 8192))
    a("s_waitcnt lgkmcnt(0)")
    a("s_barrier")
    a("s_or_b32 s%d, s2, s%d" % (sT3, sWK))
    a("s_cmp_lg_u32 s%d, 0" % sT3)
    a("s_cbranch_scc1 L_wni")
    a("s_memrealtime s[%d:%d]" % (sTS, sTS + 1))
    a("s_waitcnt lgkmcnt(0)")
    a("s_or_b32 s%d, s%d, 1" % (sT3, sTS))
    a("v_mov_b32 v10, s%d" % sT3)
    a("s_mov_b64 exec, 1")
    a("global_atomic_cmpswap v8, v[10:11], s[%d:%d] sc1" % (sDBG, sDBG + 1))
    a("s_mov_b64 exec, -1")
    a("s_nop 1")
    a.label("L_wni")
    srd_off(rA, sX, sT0, 1160)
    vX = 12
    a("buffer_load_dwordx4 v[8:11], v%d, s[%d:%d], 0 offen nt" % (vOff16, rA, rA + 3))
    a("buffer_load_ushort v20, v0, s[%d:%d], 0 offen offset:1024 nt" % (rA, rA + 3))
    srd_off(rB, sWQ, sT1, "s_sub_u32 s%%d, 0x%x, s%d" % (576 * 8192, sT1))
    vWQ = 24
    NWR = 10
    assert WQ0 < NWR
    if nowq: a("s_mov_b32 s%d, 0x70000000" % sT2)
    a("s_mov_b32 s%d, s%d" % (sWOFF, sT2))
    def wq_load(i):
        r = vWQ + 4 * (i % NWR)
        a("buffer_load_dwordx4 v[%d:%d], v2, s[%d:%d], s%d offen %s" % (r, r + 3, rB, rB + 3, sWOFF, wqpol))
        if i < 35: a("s_add_u32 s%d, s%d, 0x2000" % (sWOFF, sWOFF))
    a("v_mov_b32 v2, v3")
    if WQPF:
        a("v_lshrrev_b32 v23, 1, v%d" % vLane)
        a("v_and_b32 v22, 1, v%d" % vLane)
        a("v_lshlrev_b32 v23, 13, v23")
        a("v_lshl_add_u32 v23, v22, 7, v23")
        a("s_mul_i32 s%d, s%d, 72" % (sT3, sB))
        a("s_mul_i32 s%d, s%d, 18" % (sT2, sWK))
        a("s_add_u32 s%d, s%d, s%d" % (sT3, sT3, sT2))
        a("s_lshl_b32 s%d, s%d, 13" % (sT3, sT3))
        a("s_mov_b32 exec_hi, 15")
        a("buffer_load_dword v71, v23, s[%d:%d], s%d offen %s" % (rB, rB + 3, sT3, pfpol))
        a("s_mov_b32 exec_hi, -1")
    else:
        for i in range(WQ0):
            wq_load(i)
    vACC = 32; vTB = 24; vZ = 64; vXR = 24; vAF = 8; vWO = 68
    STB = (104, 136, 72)
    sROLE, sIDX, sSTR, sBST = sM1, sM1 + 1, sVlo, sVhi
    a("s_add_u32 s%d, s%d, %d" % (sROLE, sJ, JROT))
    a("s_and_b32 s%d, s%d, 31" % (sROLE, sROLE))
    if nomlp: a("s_mov_b32 s%d, 31" % sROLE)
    a("v_and_b32 v69, 7, v%d" % vLane)
    a("v_lshrrev_b32 v70, 3, v%d" % vLane)
    a("s_cmp_eq_u32 s%d, 0" % sWK)
    a("s_cbranch_scc1 L_ns0")
    a("s_cmp_ge_u32 s%d, 18" % sROLE)
    a("s_cbranch_scc1 L_ns2")
    a("s_sub_u32 s%d, s%d, 9" % (sIDX, sROLE))
    a("s_cmp_lt_u32 s%d, 9" % sROLE)
    a("s_cselect_b32 s%d, s%d, s%d" % (sIDX, sROLE, sIDX))
    a("s_cselect_b32 s%d, s%d, s%d" % (sT2, sW1, sW3))
    a("s_cselect_b32 s%d, s%d, s%d" % (sT3, sW1 + 1, sW3 + 1))
    a("s_mul_i32 s%d, s%d, 9" % (sT0, sXG))
    a("s_add_u32 s%d, s%d, s%d" % (sIDX, sIDX, sT0))
    a("s_lshl_b32 s%d, s%d, 7" % (sT0, sIDX))
    a("s_add_u32 s%d, s%d, s%d" % (rKV, sT2, sT0))
    a("s_addc_u32 s%d, s%d, 0" % (rKV + 1, sT3))
    a("s_sub_u32 s%d, 0x%x, s%d" % (rKV + 2, 576 * 9216, sT0))
    a("s_mov_b32 s%d, 9216" % sSTR)
    a("s_mov_b32 s%d, %d" % (sBST, 57 * 9216))
    a("s_mov_b32 s%d, %d" % (sT1, 8 * 9216))
    a("s_branch L_nsj")
    a.label("L_ns2")
    a("s_sub_u32 s%d, s%d, 18" % (sIDX, sROLE))
    a("s_mul_i32 s%d, s%d, %d" % (sT0, sXG, 576 * 1152))
    a("s_lshl_b32 s%d, s%d, 7" % (sT1, sIDX))
    a("s_add_u32 s%d, s%d, s%d" % (sT0, sT0, sT1))
    a("s_cmp_ge_u32 s%d, 27" % sROLE)
    a("s_cselect_b32 s%d, 0, s%d" % (sT0, sT0))
    a("s_cselect_b32 s%d, 0, 0x%x" % (sT1, 4608 * 1152))
    a("s_add_u32 s%d, s%d, s%d" % (rKV, sW2, sT0))
    a("s_addc_u32 s%d, s%d, 0" % (rKV + 1, sW2 + 1))
    a("s_sub_u32 s%d, s%d, s%d" % (rKV + 2, sT1, sT0))
    a("s_mov_b32 s%d, 1152" % sSTR)
    a("s_mov_b32 s%d, %d" % (sBST, 57 * 1152))
    a("s_mov_b32 s%d, %d" % (sT1, 8 * 1152))
    a.label("L_nsj")
    if 'l' in mno: a("s_mov_b32 s%d, 0" % (rKV + 2))
    a("s_sub_u32 s%d, s%d, 1" % (sT2, sWK))
    a("s_mul_i32 s%d, s%d, 192" % (sT2, sT2))
    a("s_mul_i32 s%d, s%d, s%d" % (sOFF, sT2, sSTR))
    a("s_branch L_nse")
    a.label("L_ns0")
    a("s_mul_i32 s%d, s%d, 0x%x" % (sT0, sH, 128 * 1152))
    a("s_add_u32 s%d, s%d, 1024" % (sT0, sT0))
    a("s_add_u32 s%d, s%d, s%d" % (rKV, sWO, sT0))
    a("s_addc_u32 s%d, s%d, 0" % (rKV + 1, sWO + 1))
    a("s_sub_u32 s%d, 0x%x, s%d" % (rKV + 2, 4096 * 1152, sT0))
    if nowo: a("s_mov_b32 s%d, 0" % (rKV + 2))
    a("s_mov_b32 s%d, 1152" % sSTR)
    a("s_mov_b32 s%d, %d" % (sBST, 57 * 1152))
    a("s_mov_b32 s%d, %d" % (sT1, 8 * 1152))
    a("s_mov_b32 s%d, 0" % sOFF)
    a.label("L_nse")
    a("s_mov_b32 s%d, 0x20000" % (rKV + 3))
    a("v_mul_lo_u32 v%d, v70, s%d" % (vWO, sT1))
    a("v_lshl_add_u32 v%d, v69, 4, v%d" % (vWO, vWO))
    def ns_load(k, pace=None):
        r = STB[k // 8] + 4 * (k % 8)
        if pace is not None: a("s_waitcnt vmcnt(%d)" % (pace - 1))
        a("buffer_load_dwordx4 v[%d:%d], v%d, s[%d:%d], s%d offen %s" % (r, r + 3, vWO, rKV, rKV + 3, sOFF, mpol))
        a("s_add_u32 s%d, s%d, s%d" % (sOFF, sOFF, sSTR if k % 8 < 7 else sBST))
    stamp("issued")
    common_setup()
    make_masks(22, 23)
    a("s_mul_i32 s%d, s%d, 2304" % (sT2, sWK))
    a("v_lshl_add_u32 v3, v%d, 5, s%d" % (vLane, sT2))
    a("s_mul_i32 s%d, s%d, 2880" % (sT3, sWK))
    a("v_mul_u32_u24 v0, 144, v21")
    a("v_add_u32 v0, s%d, v0" % sT3)
    a("s_waitcnt vmcnt(%d)" % (1 if WQPF else WQ0))
    for k in range(4):
        a("v_lshlrev_b32 v%d, 16, v%d" % (vX + 2 * k, 8 + k))
        a("v_and_b32 v%d, 0xffff0000, v%d" % (vX + 2 * k + 1, 8 + k))
    a("v_lshlrev_b32 v20, 16, v20")
    vs = 8
    a("v_add_f32 v%d, v%d, v%d" % (vs, vX, vX + 1))
    for t in range(2, 9):
        a("v_add_f32 v%d, v%d, v%d" % (vs, vs, vX + t))
    wave_reduce("v_add_f32", vs, sT3)
    vmean = 9
    a("v_mov_b32 v%d, 0x%x" % (vmean, INV576))
    a("v_mul_f32 v%d, s%d, v%d" % (vmean, sT3, vmean))
    a("v_sub_f32 v10, v%d, v%d" % (vX, vmean))
    a("v_mul_f32 v%d, v10, v10" % vs)
    for t in range(1, 9):
        a("v_sub_f32 v10, v%d, v%d" % (vX + t, vmean))
        a("v_fmac_f32 v%d, v10, v10" % vs)
    wave_reduce("v_add_f32", vs, sT3)
    a("v_mov_b32 v10, 0x%x" % INV576)
    a("v_mul_f32 v10, s%d, v10" % sT3)
    ln_scalars(vmean, 10, 8, 11, 21)
    for t in range(9):
        a("v_sub_f32 v%d, v%d, v8" % (vX + t, vX + t))
    for t in range(9):
        rbf(vX + t, vX + t)
    for t in range(9):
        div1(9, vX + t, 11, 21, 10)
        a("v_cvt_pk_bf16_f32 v%d, v9, v9" % (vX + t))
    a("ds_write_b128 v3, v[12:15] offset:%d" % L_XD)
    a("ds_write_b128 v3, v[16:19] offset:%d" % (L_XD + 16))
    a("v_lshlrev_b32 v22, 2, v%d" % vLane)
    a("v_add_u32 v22, s%d, v22" % sT2)
    a("ds_write_b32 v22, v20 offset:%d" % (L_XD + 2048))
    a("ds_read_b128 v[12:15], v0 offset:%d" % L_XD)
    stamp("ln")
    if WQPF:
        if WQPF == 2: a("s_waitcnt vmcnt(0)")
        for i in range(WQ0):
            wq_load(i)
    nsi = 0
    for i in range(36):
        Xc = 12 if (i >> 2) % 2 == 0 else 16
        Xn = 16 if (i >> 2) % 2 == 0 else 12
        if i + WQ0 < 36: wq_load(i + WQ0)
        elif nsi < NC:
            ns_load(nsi); nsi += 1
        if i % 4 == 0:
            a("s_waitcnt lgkmcnt(0)")
            if i + 4 < 36:
                a("ds_read_b128 v[%d:%d], v0 offset:%d" % (Xn, Xn + 3, L_XD + 4 * i + 16))
        for r in range(4):
            a("v_and_b32 v%d, v%d, v%d" % (20 + r, Xc + (i % 4), vM + r))
        a("s_waitcnt vmcnt(%d)" % (min(WQ0, 35 - i) + nsi))
        mfma(8, 20, vWQ + 4 * (i % NWR), i == 0)
    for k in range(NC2):
        ns_load(nsi); nsi += 1
    assert nsi <= 16
    a("v_lshlrev_b32 v%d, 4, v%d" % (vOff16, vLane))
    part_addr(0, 3, sWK)
    a("ds_write_b128 v0, v[8:11] offset:%d" % L_QP)
    a("v_mov_b32 v12, 0"); a("v_mov_b32 v13, 1")
    a("s_mov_b64 exec, 1")
    a("ds_add_rtn_u32 v14, v12, v13 offset:%d" % (L_CNT + 8))
    a("s_mov_b64 exec, -1")
    a("v_lshlrev_b32 v15, 3, v%d" % vLane)
    a("s_waitcnt lgkmcnt(0)")
    a("v_readfirstlane_b32 s%d, v14" % sT2)
    a("s_cmp_lg_u32 s%d, 3" % sT2)
    a("s_cbranch_scc1 L_qnl")
    for k in range(4):
        a("ds_read_b64 v[%d:%d], v15 offset:%d" % (16 + 2 * k, 17 + 2 * k, L_QP + 512 * k))
    a("v_lshlrev_b32 v15, 2, v%d" % vLane)
    a("s_waitcnt lgkmcnt(0)")
    a("v_pk_add_f32 v[16:17], v[16:17], v[18:19]")
    a("v_pk_add_f32 v[20:21], v[20:21], v[22:23]")
    a("v_pk_add_f32 v[16:17], v[16:17], v[20:21]")
    a("v_cvt_pk_bf16_f32 v16, v16, v17")
    a("ds_write_b32 v15, v16 offset:%d" % L_QF)
    a("s_mov_b64 exec, 1")
    a("ds_write_b32 v12, v13 offset:%d" % (L_CNT + 20))
    a("s_mov_b64 exec, -1")
    a.label("L_qnl")
    if wprio: a("s_setprio 0")
    stamp("qmf")
    a("s_cmp_eq_u32 s%d, 0" % sWK)
    a("s_cbranch_scc1 L_w0")
    a("s_cmp_ge_u32 s%d, 27" % sROLE)
    a("s_cbranch_scc1 L_fin")
    a("s_sub_u32 s%d, s%d, 1" % (sWK, sWK))
    a("s_mov_b32 s%d, 0x05040100" % sSEL0)
    a("s_mov_b32 s%d, 0x07060302" % sSEL1)
    a("s_cmp_ge_u32 s%d, 18" % sROLE)
    a("s_cbranch_scc1 L_dn")
    srd(rA, sX, 8 * 1152 if 'x' not in mno else 0)
    a("v_mul_u32_u24 v22, 1152, v69")
    a("v_lshl_add_u32 v22, v70, 4, v22")
    for blk in range(9):
        a("buffer_load_dwordx4 v[%d:%d], v22, s[%d:%d], 0 offen offset:%d" % (vXR + 4 * blk, vXR + 4 * blk + 3, rA, rA + 3, 128 * blk))
    a("s_mul_i32 s%d, s%d, 384" % (sT2, sWK))
    for q in range(3):
        a("buffer_load_dwordx4 v[%d:%d], v22, s[%d:%d], s%d offen offset:%d" % (vAF + 4 * q, vAF + 4 * q + 3, rA, rA + 3, sT2, 128 * q))
    a("v_mov_b32 v61, 0x3f803f80")
    a("s_waitcnt vmcnt(0)")
    for k in range(nsi, nsi + MW):
        ns_load(k)
    for k in range(36):
        a("v_dot2_f32_bf16 v60, v%d, v61, %s" % (vXR + k, "0" if k == 0 else "v60"))
    def red8(v, t):
        a("v_add_f32_dpp v%d, v%d, v%d row_ror:8 row_mask:0xf bank_mask:0xf" % (v, v, v))
        a("v_mov_b32 v%d, v%d" % (t, v))
        a("v_permlane16_swap_b32 v%d, v%d" % (v, t))
        a("v_add_f32 v%d, v%d, v%d" % (v, v, t))
        a("v_mov_b32 v%d, v%d" % (t, v))
        a("v_permlane32_swap_b32 v%d, v%d" % (v, t))
        a("v_add_f32 v%d, v%d, v%d" % (v, v, t))
    red8(60, 61)
    a("v_mul_f32 v60, 0x%x, v60" % (INV576 | 0x80000000))
    a("v_mov_b32 v61, v60")
    a("v_mov_b32 v62, 0"); a("v_mov_b32 v63, 0")
    for k in range(36):
        t = 20 + 2 * (k % 2)
        a("v_lshlrev_b32 v%d, 16, v%d" % (t, vXR + k))
        a("v_and_b32 v%d, 0xffff0000, v%d" % (t + 1, vXR + k))
        a("v_pk_add_f32 v[%d:%d], v[%d:%d], v[60:61]" % (t, t + 1, t, t + 1))
        a("v_pk_fma_f32 v[62:63], v[%d:%d], v[%d:%d], v[62:63]" % (t, t + 1, t, t + 1))
    a("v_add_f32 v62, v62, v63")
    red8(62, 63)
    a("v_mul_f32 v62, 0x%x, v62" % INV576)
    a("v_sub_f32 v60, 0, v60")
    ln_scalars(60, 62, 61, 63, 22)
    for k in range(12):
        a("v_lshlrev_b32 v24, 16, v%d" % (vAF + k))
        a("v_and_b32 v25, 0xffff0000, v%d" % (vAF + k))
        a("v_sub_f32 v24, v24, v61")
        a("v_sub_f32 v25, v25, v61")
        a("v_cvt_pk_bf16_f32 v25, v24, v25")
        a("v_lshlrev_b32 v24, 16, v25")
        a("v_and_b32 v25, 0xffff0000, v25")
        div1(26, 24, 63, 22, 27)
        div1(24, 25, 63, 22, 27)
        a("v_cvt_pk_bf16_f32 v%d, v26, v24" % (vAF + k))
    for k in range(nsi + MW, 24):
        ns_load(k, MW)
    stamp("aux_ln")
    lds_wait(L_CNT + 16, 1, "n1", 21, 22, 8)
    a("s_branch L_mm")
    a.label("L_dn")
    for k in range(nsi, 24):
        ns_load(k, MW)
    lds_wait(L_CNT + 16, 1, "n2", 21, 22, 8)
    tag16(21, 22, 0)
    a("s_mul_i32 s%d, s%d, 9" % (sT2, sXG))
    a("s_mul_i32 s%d, s%d, 3" % (sT3, sWK))
    a("s_add_u32 s%d, s%d, s%d" % (sT2, sT2, sT3))
    a("s_lshl_b32 s%d, s%d, 12" % (sT2, sT2))
    a("s_add_u32 s%d, s%d, 0x%x" % (sT2, sT2, WS_H))
    a("s_mov_b32 s%d, 0" % sCNT)
    HR = [24 + 4 * k for k in range(12)]
    for k in range(HD): a("s_sleep 127")
    if PROBE:
        a("s_add_u32 s%d, s%d, %d" % (sT3, sT2, 2 * 4096))
        a("s_mov_b64 exec, 0xff")
        a.label("L_hq")
        a("buffer_load_dwordx4 v[24:27], v%d, s[%d:%d], s%d offen sc1" % (vOff16, rWS, rWS + 3, sT3))
        a("buffer_load_dwordx4 v[28:31], v%d, s[%d:%d], s%d offen offset:2048 sc1" % (vOff16, rWS, rWS + 3, sT3))
        a("s_waitcnt vmcnt(0)")
        a("v_bitop3_b32 v8, v24, v28, v21 bitop3:0x7e")
        a("v_and_b32 v8, 0xffff, v8")
        a("v_cmp_ne_u32 vcc, 0, v8")
        a("s_cbranch_vccz L_hqo")
        a("s_add_u32 s%d, s%d, 1" % (sCNT, sCNT))
        a("s_cmp_gt_u32 s%d, 0x40000" % sCNT)
        a("s_cbranch_scc1 L_hqo")
        for k in range(hs2): a("s_sleep %d" % hsleep)
        a("s_branch L_hq")
        a.label("L_hqo")
        a("s_mov_b64 exec, -1")
    a.label("L_hp")
    a("s_mov_b32 s%d, s%d" % (sT3, sT2))
    if 'g' in mno: a("s_mov_b32 s%d, 0x7000000" % sT3)
    for k in range(12):
        a("buffer_load_dwordx4 v[%d:%d], v%d, s[%d:%d], s%d offen offset:%d sc1" % (HR[k], HR[k] + 3, vOff16, rWS, rWS + 3, sT3, 1024 * (k % 4)))
        if k % 4 == 3 and k < 11: a("s_add_u32 s%d, s%d, 4096" % (sT3, sT3))
    a("s_waitcnt vmcnt(0)")
    a("v_mov_b32 v20, 0")
    for k in range(12):
        a("v_bitop3_b32 v8, v%d, v%d, v21 bitop3:0x7e" % (HR[k], HR[k] + 1))
        a("v_bitop3_b32 v9, v%d, v%d, v21 bitop3:0x7e" % (HR[k] + 2, HR[k] + 3))
        a("v_or3_b32 v20, v20, v8, v9")
    a("v_and_b32 v20, 0xffff, v20")
    a("v_cmp_ne_u32 vcc, 0, v20")
    a("s_cbranch_vccz L_hok" if 'h' not in mno else "s_branch L_hok")
    a("s_add_u32 s%d, s%d, 1" % (sCNT, sCNT))
    a("s_cmp_gt_u32 s%d, 0x40000" % sCNT)
    a("s_cbranch_scc1 L_hok")
    a("s_sleep %d" % hsleep)
    a("s_branch L_hp")
    a.label("L_hok")
    for q in range(3):
        for hf in range(2):
            sg = HR[4 * q + hf]; up = HR[4 * q + 2 + hf]
            for e in range(4):
                a("v_and_b32 v%d, 0xffff0000, v%d" % (sg + e, sg + e))
                a("v_and_b32 v%d, 0xffff0000, v%d" % (up + e, up + e))
                a("v_mul_f32 v%d, v%d, v%d" % (sg + e, sg + e, up + e))
            a("v_cvt_pk_bf16_f32 v%d, v%d, v%d" % (vAF + 4 * q + 2 * hf, sg, sg + 1))
            a("v_cvt_pk_bf16_f32 v%d, v%d, v%d" % (vAF + 4 * q + 2 * hf + 1, sg + 2, sg + 3))
    stamp("aux_h")
    a.label("L_mm")
    def blk_mfma(q, A, first_zero):
        for j in range(8):
            B = vTB + 4 * (j % 2)
            for r in range(4):
                s0 = STB[q] + 4 * (2 * r + 1) + (j >> 1)
                s1 = STB[q] + 4 * (2 * r) + (j >> 1)
                a("v_perm_b32 v%d, v%d, v%d, s%d" % (B + r, s0, s1, sSEL1 if j & 1 else sSEL0))
            mfma(vACC + 4 * j, A, B, first_zero)
    for q in range(3):
        a("s_waitcnt vmcnt(%d)" % (16 - 8 * q))
        blk_mfma(q, vAF + 4 * q, q == 0)
    for j in range(8):
        D = vACC + 4 * j
        a("v_permlane32_swap_b32 v%d, v%d" % (D, D + 1))
        a("v_permlane32_swap_b32 v%d, v%d" % (D + 2, D + 3))
    for j in range(8):
        D = vACC + 4 * j
        a("v_add_f32_dpp v%d, v%d, v%d row_shl:8 row_mask:0xf bank_mask:0x3" % (vZ + j, D + 1, D))
        a("v_add_f32_dpp v%d, v%d, v%d row_shr:8 row_mask:0xf bank_mask:0xc" % (vZ + j, D + 2, D + 3))
    a("s_lshl_b32 s%d, s%d, 11" % (sT2, sWK))
    a("v_lshlrev_b32 v23, 5, v%d" % vLane)
    a("v_add_u32 v20, s%d, v23" % sT2)
    a("ds_write_b128 v20, v[%d:%d] offset:%d" % (vZ, vZ + 3, L_ZX))
    a("ds_write_b128 v20, v[%d:%d] offset:%d" % (vZ + 4, vZ + 7, L_ZX + 16))
    lds_sig(L_CNT, 21, 24)
    a("s_cmp_lg_u32 s%d, 0" % sWK)
    a("s_cbranch_scc1 L_fin")
    lds_wait(L_CNT, 3, "z", 21, 24, 2)
    for k in range(3):
        a("ds_read_b128 v[%d:%d], v23 offset:%d" % (vACC + 8 * k, vACC + 8 * k + 3, L_ZX + 2048 * k))
        a("ds_read_b128 v[%d:%d], v23 offset:%d" % (vACC + 8 * k + 4, vACC + 8 * k + 7, L_ZX + 2048 * k + 16))
    a("v_bfe_u32 v24, v%d, 3, 2" % vLane)
    a("v_lshlrev_b32 v24, 1, v24")
    a("v_lshrrev_b32 v25, 5, v%d" % vLane)
    a("v_add_u32 v24, v24, v25")
    a("v_and_b32 v25, 7, v%d" % vLane)
    a("s_waitcnt lgkmcnt(0)")
    for e in range(0, 8, 2):
        a("v_pk_add_f32 v[%d:%d], v[%d:%d], v[%d:%d]" % (vZ + e, vZ + e + 1, vACC + e, vACC + e + 1, vACC + 8 + e, vACC + 9 + e))
    for e in range(0, 8, 2):
        a("v_pk_add_f32 v[%d:%d], v[%d:%d], v[%d:%d]" % (vZ + e, vZ + e + 1, vZ + e, vZ + e + 1, vACC + 16 + e, vACC + 17 + e))
    a("s_cmp_ge_u32 s%d, 18" % sROLE)
    a("s_cbranch_scc1 L_dnp")
    for j in range(8):
        rbf(vZ + j, vZ + j)
    a("s_lshl_b32 s%d, s%d, 12" % (sT2, sIDX))
    a("s_add_u32 s%d, s%d, 0x%x" % (sT2, sT2, WS_H + 2048))
    a("s_cmp_ge_u32 s%d, 9" % sROLE)
    a("s_cbranch_scc1 L_upp")
    a("s_sub_u32 s%d, s%d, 2048" % (sT2, sT2))
    for j in range(8):
        silu(vZ + j, vZ + j, 26)
        rbf(vZ + j, vZ + j)
    a.label("L_upp")
    tag16(21, 22, 5)
    for j in range(8):
        a("v_or_b32 v%d, v%d, v21" % (vZ + j, vZ + j))
    a("v_lshl_add_u32 v24, v25, 3, v24")
    a("v_lshlrev_b32 v24, 4, v24")
    if 's' in mno: a("s_mov_b32 s%d, 0x7000000" % sT2)
    a("buffer_store_dwordx4 v[%d:%d], v24, s[%d:%d], s%d offen sc1" % (vZ, vZ + 3, rWS, rWS + 3, sT2))
    a("buffer_store_dwordx4 v[%d:%d], v24, s[%d:%d], s%d offen offset:1024 sc1" % (vZ + 4, vZ + 7, rWS, rWS + 3, sT2))
    stamp("aux_s1")
    a("s_branch L_fin")
    a.label("L_dnp")
    tag16(21, 22, 0)
    nibs(8, 21)
    for j in range(8):
        a("v_bfi_b32 v%d, 15, v%d, v%d" % (vZ + j, 8 + (j % 4), vZ + j))
    a("v_mul_u32_u24 v24, %d, v24" % (8 * 2304))
    a("v_lshl_add_u32 v24, v25, 4, v24")
    a("s_mul_i32 s%d, s%d, 2304" % (sT2, sXG))
    a("s_lshl_b32 s%d, s%d, 8" % (sT3, sIDX))
    a("s_add_u32 s%d, s%d, s%d" % (sT2, sT2, sT3))
    a("s_add_u32 s%d, s%d, 0x%x" % (sT2, sT2, WS_MO))
    if 's' in mno: a("s_mov_b32 s%d, 0x7000000" % sT2)
    a("buffer_store_dwordx4 v[%d:%d], v24, s[%d:%d], s%d offen sc1" % (vZ, vZ + 3, rWS, rWS + 3, sT2))
    a("buffer_store_dwordx4 v[%d:%d], v24, s[%d:%d], s%d offen offset:128 sc1" % (vZ + 4, vZ + 7, rWS, rWS + 3, sT2))
    stamp("aux_mlp")
    a("s_branch L_fin")
    a.label("L_w0")
    if WOPF: wo_prefetch()
    a("v_mov_b32 v12, 0")
    a("global_load_dword v13, v12, s[%d:%d] sc1" % (sDBG, sDBG + 1))
    a("s_memrealtime s[%d:%d]" % (sTS, sTS + 1))
    a("s_waitcnt vmcnt(0) lgkmcnt(0)")
    a("v_readfirstlane_b32 s%d, v13" % sT2)
    a("s_cmp_lg_u32 s%d, 0" % sT2)
    a("s_cbranch_scc1 L_nok")
    a("s_or_b32 s%d, s%d, 1" % (sT3, sTS))
    a("v_mov_b32 v14, s%d" % sT3)
    a("v_mov_b32 v15, 0")
    a("s_mov_b64 exec, 1")
    a("global_atomic_cmpswap v13, v12, v[14:15], s[%d:%d] sc0 sc1" % (sDBG, sDBG + 1))
    a("s_mov_b64 exec, -1")
    a("s_waitcnt vmcnt(0)")
    a("v_readfirstlane_b32 s%d, v13" % sT2)
    a("s_cmp_eq_u32 s%d, 0" % sT2)
    a("s_cselect_b32 s%d, s%d, s%d" % (sT2, sT3, sT2))
    a.label("L_nok")
    a("v_mov_b32 v15, s%d" % sT2)
    a("ds_write_b32 v12, v15 offset:%d" % (L_CNT + 16))
    for k in range(nsi, 16):
        ns_load(k, 3)
    a("s_waitcnt vmcnt(0)")
    wo_transpose()
    stamp("aux_w")
    is_consumer()
    a("s_cbranch_scc1 L_w0t")
    lds_wait(L_CNT + 12, 8, "g", 8, 9, 64)
    tag16(8, 15, 0)
    nibs(16, 8)
    a("v_lshrrev_b32 v8, 4, v%d" % vLane)
    a("v_and_b32 v9, 15, v%d" % vLane)
    a("v_mul_u32_u24 v8, 2304, v8")
    a("v_lshl_add_u32 v8, v9, 4, v8")
    a("s_mul_i32 s%d, s%d, %d" % (sT2, sB, 8 * 2304))
    a("s_add_u32 s%d, s%d, 0x%x" % (sT2, sT2, WS_MO))
    a("s_add_u32 s%d, s%d, %d" % (sT3, sT2, 4 * 2304))
    xfin_addr(10, 11)
    a("v_and_b32 v10, 7, v%d" % vLane)
    a("v_lshl_add_u32 v10, v10, 3, v11")
    a("v_bfe_u32 v11, v%d, 3, 1" % vLane)
    a("v_lshl_add_u32 v10, v11, 2, v10")
    a("v_lshlrev_b32 v10, 2, v10")
    a("s_mov_b32 s%d, 0" % sCNT)
    GB = 28
    a.label("L_gp")
    for u in range(9):
        a("buffer_load_dwordx4 v[%d:%d], v8, s[%d:%d], s%d offen offset:%d sc1" % (GB + 8 * u, GB + 8 * u + 3, rWS, rWS + 3, sT2, 256 * u))
        a("buffer_load_dwordx4 v[%d:%d], v8, s[%d:%d], s%d offen offset:%d sc1" % (GB + 8 * u + 4, GB + 8 * u + 7, rWS, rWS + 3, sT3, 256 * u))
    a("s_waitcnt vmcnt(0)")
    a("v_mov_b32 v24, 0")
    for u in range(9):
        for k in range(0, 4, 2):
            a("v_bitop3_b32 v25, v%d, v%d, v%d bitop3:0x7e" % (GB + 8 * u + k, GB + 8 * u + 4 + k, 16 + k))
            a("v_bitop3_b32 v26, v%d, v%d, v%d bitop3:0x7e" % (GB + 8 * u + k + 1, GB + 8 * u + 5 + k, 17 + k))
            a("v_or3_b32 v24, v24, v25, v26")
    a("v_and_b32 v24, 15, v24")
    a("v_cmp_ne_u32 vcc, 0, v24")
    a("s_cbranch_vccz L_gok" if not (nomlp or mno) else "s_branch L_gok")
    a("s_add_u32 s%d, s%d, 1" % (sCNT, sCNT))
    a("s_cmp_gt_u32 s%d, 0x40000" % sCNT)
    a("s_cbranch_scc1 L_fin")
    a("s_sleep 64")
    a("s_branch L_gp")
    a.label("L_gok")
    for u in range(9):
        g = GB + 8 * u
        for k in range(8):
            a("v_and_b32 v%d, -16, v%d" % (g + k, g + k))
        a("v_pk_add_f32 v[%d:%d], v[%d:%d], v[%d:%d]" % (g, g + 1, g, g + 1, g + 4, g + 5))
        a("v_pk_add_f32 v[%d:%d], v[%d:%d], v[%d:%d]" % (g + 2, g + 3, g + 2, g + 3, g + 6, g + 7))
        xreduce(g)
        rbf(g, g)
        silu(g + 1, g, g + 2)
        rbf(g + 1, g + 1)
        a("ds_write_b32 v10, v%d offset:%d" % (g + 1, L_G + 256 * u))
    stamp("aux_red")
    a.label("L_w0t")
    tail_prep("tw")
    a("s_setprio 3")
    a("s_branch L_tail")
    a.label("L_end")
    a("s_endpgm")
    body = a.finalize()
    out = HEADER
    out += "; @launch grid=(256,1,1) block=(768,1,1) lds=%d\n" % L_END
    out += '.amdgcn_target "amdgcn-amd-amdhsa--gfx950"\n.text\n.globl %s\n.p2align 8\n.type %s,@function\n' % (K, K)
    out += body
    out += '.section .rodata,"a"\n.p2align 6\n.amdhsa_kernel %s\n' % K
    out += "  .amdhsa_next_free_vgpr 168\n  .amdhsa_next_free_sgpr %d\n  .amdhsa_accum_offset 168\n" % (100 if (ts or RC or CC) else 72)
    out += "  .amdhsa_group_segment_fixed_size 0\n  .amdhsa_kernarg_size 96\n  .amdhsa_user_sgpr_count 2\n"
    out += "  .amdhsa_user_sgpr_kernarg_segment_ptr 1\n  .amdhsa_system_sgpr_workgroup_id_x 1\n.end_amdhsa_kernel\n"
    if ts: out += "; STAMPS " + ",".join(stampnames) + "\n"
    return out

if __name__ == "__main__":
    if len(sys.argv) > 1 and sys.argv[1].startswith("["):
        names = []
        for c in eval(sys.argv[1]):
            n = "k15_" + "_".join("%s%s" % (k, str(v).replace(" ", "").replace("(", "").replace(")", "").replace(",", "-")) for k, v in c.items()) + ".s"
            open(n, "w").write(gen(**c)); names.append(n)
        print(" ".join(names))
    else:
        kw = eval("dict(%s)" % (sys.argv[2] if len(sys.argv) > 2 else ""))
        open(sys.argv[1] if len(sys.argv) > 1 else "k.s", "w").write(gen(**kw))
```

```python
import sys
from asmlib import Asm
NAME = "recurrent_scan__mha_block_cached__glu_gated_swiglu__decode"
HEADER = open("cdna_kernels/%s.s.ref" % NAME).read().split("; Override launch")[0]

LOG2E = 0x3fb8aa3b
SCALE = 0x3db504f3
INV576 = 0x3ae38e39
EPS = 0x3727c5ac

L_QP = 0
L_OP = 2048
L_ST = 6144
L_CNT = 6208
L_G = 6272
L_OD = 8576
L_XD = 13184
L_ZX = 22400
L_P = L_ZX + 3 * 2048
PG = 528
L_QF = L_P + 8 * 4 * PG
L_END = L_QF + 256

WS_H = 1 << 20
WS_MO = (1 << 20) + (512 << 10)
WS_RT = 2 << 20
WS_TS = 4 << 20


DOC = """; ---------------------------------------------------------------------------------------------
; ---------------------------------------------------------------------------------------------
"""

def gen(LA=8, PLA=4, VT=10, pol="nt", wqpol="", wopol="", mpol="", ts=False, poll_sleep=1, nomlp=False,
        PR=37, early=(1, 2, 3, 8, 14, 20, 26, 32, 35, 36), prio=3, TW=(6, 6), TS=2, KW=(3, 3), VW=(3, 3), EW=6, EN=0, MW=3,
        ad=None, CW=None, nowo=False, nowq=False, mno='', hsleep=127, JROT=0, HD=0, V3=(2, 3, 6, 4200, 430, 200), VB=None, KB=None, PW2=None, PN=99, WQ0=8, RC=None, RT=None, WS0=44, WS1=124, KX=1, PH=None, wprio=0, NC=8, CC=(2, 3, 4, -40, 40, 33, 480, 435, 150, 3), NSET=1, stpol='sc1', PS=4, tprio=None, P0=0, PROBE=True, SEL=True, hs2=1, SMI=True, SW=4, NC2=0, WOPF=1, WQPF=2, CH=None, PF=0, pfpol='', PFW=1):
    R = 16
    a = Asm()
    sX, sK, sV, sWQ, sWO, sW1, sW3, sW2, sOUT, sDBG, sWS = 4, 6, 8, 10, 12, 16, 18, 20, 22, 24, 26
    sWAVE = 3
    sB, sH, sBH = 28, 29, 30
    sT0, sT1, sT2, sT3 = 31, 32, 33, 34
    sCNT = 35
    rKV, rA, rB, rWS = 36, 40, 44, 48
    sVlo, sVhi = 52, 53
    sOFF = 54
    sWOFF = 55
    sM1, sM2 = 56, 58
    sSEL0, sSEL1 = 60, 61
    sTS = 62
    sTSB = 64
    sSLOT = 65
    sU, sUN, sWK = 66, 67, 68
    sXG, sJ = 69, 70
    sDL = 71
    sMS, sREF, sISR, sEO, sST0 = 14, 96, 15, 71, 17
    if RC or CC: V3 = None
    sRB, sMODE = 18, 19
    vLane, vOff16, vXf = 1, 2, 3
    vM = 4; vQ = 8; vS = 12; vAcc = 20; vA0 = 24; vA1 = 28; vP0 = 12; vP1 = 16
    vT = 24
    vPA, vPR, vPW, vWOA = 36, 37, 38, 39
    vRing = 40
    vW = 104
    stampnames = {}
    def stamp(tag):
        if not ts: return
        if tag not in stampnames: stampnames[tag] = len(stampnames)
        k = stampnames[tag]
        assert k < 24
        a("s_memrealtime s[%d:%d]" % (sTS, sTS + 1))
        a("s_waitcnt lgkmcnt(0)")
        a("s_mov_b32 s%d, s%d" % (72 + k, sTS))
    def stamp_flush():
        if not ts: return
        a("v_mov_b32 v23, s%d" % sTSB)
        a("s_mov_b64 exec, 1")
        for k in range(24):
            a("v_mov_b32 v22, s%d" % (72 + k))
            a("buffer_store_dword v22, v23, s[%d:%d], 0 offen offset:%d" % (rWS, rWS + 3, 4 * k))
        a("s_mov_b64 exec, -1")
    def srd_tail(r, nrec):
        if isinstance(nrec, int): a("s_mov_b32 s%d, 0x%x" % (r + 2, nrec))
        else: a(nrec % (r + 2))
        a("s_mov_b32 s%d, 0x20000" % (r + 3))
    def srd(r, base, nrec):
        a("s_mov_b32 s%d, s%d" % (r, base)); a("s_mov_b32 s%d, s%d" % (r + 1, base + 1))
        srd_tail(r, nrec)
    def srd_off(r, base, soff, nrec):
        a("s_add_u32 s%d, s%d, s%d" % (r, base, soff))
        a("s_addc_u32 s%d, s%d, 0" % (r + 1, base + 1))
        srd_tail(r, nrec)
    def wave_reduce(op, v, sdst):
        for r in (8, 4, 2, 1):
            a("%s_dpp v%d, v%d, v%d row_ror:%d row_mask:0xf bank_mask:0xf" % (op, v, v, v, r))
        a("%s_dpp v%d, v%d, v%d row_bcast:15 row_mask:0xa bank_mask:0xf" % (op, v, v, v))
        a("%s_dpp v%d, v%d, v%d row_bcast:31 row_mask:0xc bank_mask:0xf" % (op, v, v, v))
        a("v_readlane_b32 s%d, v%d, 63" % (sdst, v))
    def rbf(d, s):
        a("v_cvt_pk_bf16_f32 v%d, v%d, v%d" % (d, s, s))
        a("v_and_b32 v%d, 0xffff0000, v%d" % (d, d))
    def ln_scalars(vmean, vvar, vmb, vsd, vrs):
        rbf(vmb, vmean)
        rbf(vsd, vvar)
        a("v_add_f32 v%d, 0x%x, v%d" % (vsd, EPS, vsd))
        rbf(vsd, vsd)
        a("v_sqrt_f32 v%d, v%d" % (vsd, vsd))
        rbf(vsd, vsd)
        a("v_rcp_f32 v%d, v%d" % (vrs, vsd))
    def div1(d, n, vsd, vrs, t):
        a("v_mul_f32 v%d, v%d, v%d" % (d, n, vrs))
        a("v_fma_f32 v%d, -v%d, v%d, v%d" % (t, d, vsd, n))
        a("v_fma_f32 v%d, v%d, v%d, v%d" % (d, t, vrs, d))
    def silu(d, x, t):
        a("v_mul_f32 v%d, 0x%x, v%d" % (t, LOG2E | 0x80000000, x))
        a("v_exp_f32 v%d, v%d" % (t, t))
        a("v_add_f32 v%d, 1.0, v%d" % (t, t))
        a("v_rcp_f32 v%d, v%d" % (t, t))
        a("v_mul_f32 v%d, v%d, v%d" % (d, x, t))
    def mfma(D, A, B, zero):
        a("v_mfma_f32_16x16x32_bf16 v[%d:%d], v[%d:%d], v[%d:%d], %s" % (D, D + 3, A, A + 3, B, B + 3, "0" if zero else "v[%d:%d]" % (D, D + 3)))
    def make_masks(t0, t1):
        a("v_and_b32 v%d, 1, v%d" % (t0, vLane))
        a("v_lshlrev_b32 v%d, 4, v%d" % (t0, t0))
        a("v_mov_b32 v%d, 0xffff" % t1)
        a("v_lshlrev_b32 v%d, v%d, v%d" % (t0, t0, t1))
        a("v_bfe_u32 v%d, v%d, 1, 2" % (t1, vLane))
        for r in range(4):
            a("v_cmp_eq_u32 vcc, %d, v%d" % (r, t1))
            a("v_cndmask_b32 v%d, 0, v%d, vcc" % (vM + r, t0))
    def xfin_addr(d, t):
        a("v_lshrrev_b32 v%d, 4, v%d" % (t, vLane))
        a("v_bfrev_b32 v%d, v%d" % (t, t))
        a("v_lshrrev_b32 v%d, 30, v%d" % (t, t))
        a("v_and_b32 v%d, 15, v%d" % (d, vLane))
        a("v_lshl_add_u32 v%d, v%d, 2, v%d" % (d, d, t))
    def part_addr(d, t, sw):
        a("v_and_b32 v%d, 15, v%d" % (d, vLane))
        a("v_bfe_u32 v%d, v%d, 4, 1" % (t, vLane))
        a("v_lshlrev_b32 v%d, 5, v%d" % (d, d))
        a("v_lshl_add_u32 v%d, v%d, 4, v%d" % (d, t, d))
        a("s_lshl_b32 s%d, s%d, 9" % (sT2, sw))
        a("v_add_u32 v%d, s%d, v%d" % (d, sT2, d))
    def wo_setup(t):
        a("s_mul_i32 s%d, s%d, 0x%x" % (sT2, sH, 128 * 1152))
        a("s_lshl_b32 s%d, s%d, 7" % (sT3, sUN))
        a("s_add_u32 s%d, s%d, s%d" % (sT2, sT2, sT3))
        srd_off(rB, sWO, sT2, "s_sub_u32 s%%d, 0x%x, s%d" % (4096 * 1152, sT2))
        a("v_lshrrev_b32 v%d, 3, v%d" % (vWOA, vLane))
        a("v_and_b32 v%d, 7, v%d" % (t, vLane))
        a("v_mul_u32_u24 v%d, 0x%x, v%d" % (vWOA, 8 * 1152, vWOA))
        a("v_lshl_add_u32 v%d, v%d, 4, v%d" % (vWOA, t, vWOA))
        a("s_mov_b32 s%d, 0" % sWOFF)
    def wo_load(i):
        if nowo: a("s_mov_b32 s%d, 0x7fffffff" % sWOFF)
        a("buffer_load_dwordx4 v[%d:%d], v%d, s[%d:%d], s%d offen offset:%d %s" % (vW + 4 * i, vW + 4 * i + 3, vWOA, rB, rB + 3, sWOFF, (i % 2) * 1152, wopol))
        if i % 2 == 1 and i < 15: a("s_add_u32 s%d, s%d, %d" % (sWOFF, sWOFF, 2304 if i != 7 else 58 * 1152))
    def xf_load(t0, t1):
        xfin_addr(t0, t1)
        a("s_lshl_b32 s%d, s%d, 7" % (sT3, sUN))
        a("v_lshlrev_b32 v%d, 1, v%d" % (t0, t0))
        a("buffer_load_ushort v%d, v%d, s[%d:%d], s%d offen nt" % (vXf, t0, rA, rA + 3, sT3))
    def lds_wait(off, n, tag, va, vb, sleep=1):
        a("v_mov_b32 v%d, 0" % va)
        a.label("L_lw" + tag)
        a("ds_read_b32 v%d, v%d offset:%d" % (vb, va, off))
        a("s_waitcnt lgkmcnt(0)")
        a("v_readfirstlane_b32 s%d, v%d" % (sT2, vb))
        a("s_cmp_ge_u32 s%d, %d" % (sT2, n))
        a("s_cbranch_scc1 L_lg" + tag)
        a("s_sleep %d" % sleep)
        a("s_branch L_lw" + tag)
        a.label("L_lg" + tag)
    def lds_sig(off, va, vb):
        a("v_mov_b32 v%d, 0" % va); a("v_mov_b32 v%d, 1" % vb)
        a("s_mov_b64 exec, 1")
        a("ds_add_u32 v%d, v%d offset:%d" % (va, vb, off))
        a("s_mov_b64 exec, -1")
    def tag16(d, vn, bit):
        a("v_bfe_u32 v%d, v%d, %d, 1" % (d, vLane, bit))
        a("v_lshlrev_b32 v%d, 4, v%d" % (d, d))
        a("v_bfe_u32 v%d, v%d, v%d, 16" % (d, vn, d))
    def nibs(d, t16):
        for k in range(3, -1, -1):
            a("v_bfe_u32 v%d, v%d, %d, 4" % (d + k, t16, 4 * k))
    sPUB = 16
    def wo_transpose(hook=None):
        a("s_mov_b32 s%d, 0x05040100" % sSEL0)
        a("s_mov_b32 s%d, 0x07060302" % sSEL1)
        TQ = [88, 92, 96, 100, 8, 20, 24, 32]
        for t, dst in ((0, TQ), (1, [vW + 4 * j for j in range(8)])):
            if hook: hook()
            for j in range(8):
                for r in range(4):
                    s0 = vW + 32 * t + 4 * (2 * r + 1) + (j >> 1)
                    s1 = vW + 32 * t + 4 * (2 * r) + (j >> 1)
                    a("v_perm_b32 v%d, v%d, v%d, s%d" % (dst[j] + r, s0, s1, sSEL1 if j & 1 else sSEL0))
        for j in range(8):
            for r in range(4):
                a("v_mov_b32 v%d, v%d" % (vW + 32 + 4 * j + r, TQ[j] + r))
    def tail_prep(tag):
        lds_wait(L_CNT + 16, 1, tag, 38, 39, 4)
        tag16(0, 39, 4)
        a("v_lshlrev_b32 v38, 3, v%d" % vLane)
        a("v_and_b32 v3, 7, v%d" % vLane)
        a("v_lshrrev_b32 v39, 4, v%d" % vLane)
        a("v_lshlrev_b32 v3, 5, v3")
        a("v_lshl_add_u32 v3, v39, 4, v3")
        a("v_lshrrev_b32 v39, 3, v%d" % vLane)
        a("v_lshlrev_b32 v39, 4, v39")
        a("s_mul_i32 s%d, s%d, 2304" % (sPUB, sSLOT))
        a("s_lshl_b32 s%d, s%d, 8" % (sU, sUN))
        a("s_add_u32 s%d, s%d, s%d" % (sPUB, sPUB, sU))
        a("s_mov_b32 s%d, 0xffff0000" % sM1); a("s_mov_b32 s%d, 0xffff0000" % (sM1 + 1))
    def is_consumer():
        a("s_lshl2_add_u32 s%d, s%d, 3" % (sT2, sB))
        a("s_cmp_lg_u32 s%d, s%d" % (sH, sT2))
    def wo_prefetch():
        a("s_mul_i32 s%d, s%d, 0x%x" % (sT2, sH, 128 * 1152))
        a("s_mul_i32 s%d, s%d, 18432" % (sT3, sB))
        a("s_add_u32 s%d, s%d, s%d" % (sT2, sT2, sT3))
        srd_off(rB, sWO, sT2, 18432)
        a("v_lshlrev_b32 v71, 7, v%d" % vLane)
        for k in range(3):
            a("s_mov_b32 s%d, %d" % (sT3, 8192 * k))
            a("buffer_load_dword v70, v71, s[%d:%d], s%d offen %s" % (rB, rB + 3, sT3, pfpol))
    def common_setup():
        srd(rWS, sWS, 8 << 20)
        if ts:
            a("s_mul_i32 s%d, s2, 12" % sTSB); a("s_add_u32 s%d, s%d, s%d" % (sTSB, sTSB, sWAVE))
            a("s_lshl_b32 s%d, s%d, 7" % (sTSB, sTSB)); a("s_add_u32 s%d, s%d, 0x%x" % (sTSB, sTSB, WS_TS))

    K = NAME + "_kernel"
    a.label(K)
    a("s_cmp_ge_u32 s2, 256")
    a("s_cbranch_scc1 L_end")
    if ts:
        for k in range(24): a("s_mov_b32 s%d, 0" % (72 + k))
    stamp("start")
    a("s_load_dwordx16 s[4:19], s[0:1], 0")
    a("s_load_dwordx8 s[20:27], s[0:1], 64")
    if ad or V3 or RC or CC: a("s_memrealtime s[%d:%d]" % (sTS, sTS + 1))
    a("v_lshrrev_b32 v2, 6, v0")
    a("v_and_b32 v%d, 63, v0" % vLane)
    a("v_readfirstlane_b32 s%d, v2" % sWAVE)
    a("v_lshlrev_b32 v%d, 4, v%d" % (vOff16, vLane))
    a("s_and_b32 s%d, s2, 7" % sXG)
    a("s_lshr_b32 s%d, s2, 3" % sJ)
    a("s_and_b32 s%d, s%d, 3" % (sH, sJ))
    a("s_lshl2_add_u32 s%d, s%d, s%d" % (sH, sXG, sH))
    a("s_lshr_b32 s%d, s%d, 2" % (sB, sJ))
    a("s_lshl_b32 s%d, s%d, 5" % (sSLOT, sB))
    a("s_add_u32 s%d, s%d, s%d" % (sSLOT, sSLOT, sH))
    a("s_lshl_b32 s%d, s%d, 20" % (sBH, sSLOT))
    a("s_lshl_b32 s%d, s%d, 12" % (sOFF, sWAVE))
    a("s_mul_i32 s%d, s%d, 1152" % (sT0, sB))
    a("s_lshl_b32 s%d, s%d, 8" % (sT1, sH))
    a("s_min_u32 s%d, s%d, 8" % (sUN, sWAVE))
    a("s_cmp_ge_u32 s%d, 8" % sWAVE)
    a("s_cbranch_scc1 L_w")
    a("s_waitcnt lgkmcnt(0)")
    srd_off(rKV, sK, sBH, 1 << 20)
    if prio: a("s_setprio %d" % prio)
    cur = {"pol": pol}
    def issue(n, switch, reg=None):
        j = n % 4; r = vRing + 4 * (n % R) if reg is None else reg
        a("buffer_load_dwordx4 v[%d:%d], v%d, s[%d:%d], s%d offen offset:%d %s" % (r, r + 3, vOff16, rKV, rKV + 3, sOFF, j * 1024, cur['pol']))
        if j == 3:
            a("s_add_u32 s%d, s%d, 0x8000" % (sOFF, sOFF))
            if switch:
                a("s_cmp_ge_u32 s%d, 0x100000" % sOFF)
                a("s_cselect_b32 s%d, s%d, s%d" % (rKV, sVlo, rKV))
                a("s_cselect_b32 s%d, s%d, s%d" % (rKV + 1, sVhi, rKV + 1))
                a("s_and_b32 s%d, s%d, 0xfffff" % (sOFF, sOFF))
    lab = [0]
    def wait2(small, big):
        if small == big:
            a("s_waitcnt vmcnt(%d)" % small); return
        lab[0] += 1
        a("s_cbranch_vccnz L_wd%d" % lab[0])
        a("s_waitcnt vmcnt(%d)" % small)
        a.label("L_wd%d" % lab[0])
        a("s_waitcnt vmcnt(%d)" % big)
    extra = [12, 20, 4, 36]
    def preg(m):
        if PR == 32: return vRing + 4 * m
        if m == 0: return 16
        if m <= 16: return vRing + 4 * ((PR + m - 1) % 16)
        if m <= 32: return vW + 4 * (m - 17)
        return extra[m - 33]
    assert PR == 32 or 33 <= PR <= 37
    for n in range(PLA):
        issue(n, False, preg(n))
    a("s_barrier")
    stamp("issued")
    common_setup()
    if V3: a("s_add_u32 s%d, s%d, %d" % (sDL, sTS, V3[3]))
    if CC:
        a("s_mov_b32 s%d, s%d" % (sST0, sTS))
        a("s_cmp_eq_u32 s2, %d" % CC[5])
        a("s_cselect_b32 s%d, 1, 0" % sISR)
        a("s_mov_b32 s%d, 0" % sRB)
    if RC:
        a("s_mov_b32 s%d, s%d" % (sST0, sTS))
        a("s_mov_b32 s%d, 0" % sISR)
        for r_, wg in enumerate(RC[5]):
            a("s_cmp_eq_u32 s2, %d" % wg)
            a("s_cselect_b32 s%d, %d, s%d" % (sISR, r_ + 1, sISR))
    srd_off(rA, sX, sT0, 1160)
    a("s_add_u32 s%d, s%d, s%d" % (sVlo, sV, sBH)); a("s_addc_u32 s%d, s%d, 0" % (sVhi, sV + 1))
    a("s_mov_b32 s%d, 0xaaaaaaaa" % sM1); a("s_mov_b32 s%d, 0xaaaaaaaa" % (sM1 + 1))
    a("s_mov_b32 s%d, 0xcccccccc" % sM2); a("s_mov_b32 s%d, 0xcccccccc" % (sM2 + 1))
    a("v_and_b32 v0, 15, v%d" % vLane)
    a("v_lshlrev_b32 v0, 4, v0")
    if PH:
        a("s_cmp_lt_u32 s%d, %d" % (sWAVE, PH))
        a("s_cselect_b64 vcc, -1, 0")
    for n in range(PLA, PR):
        w = PLA if (PW2 is None or n < PN) else PW2
        if PH: wait2(w - 2, w - 1)
        else: a("s_waitcnt vmcnt(%d)" % (w - 1))
        issue(n, False, preg(n))
    stamp("preB1")
    if PF:
        a("v_lshlrev_b32 v35, 7, v%d" % vLane)
        a("v_mov_b32 v24, 0")
        a("s_mov_b32 s%d, s%d" % (sT0, sOFF))
        for k in range(PF):
            a("ds_read_b32 v25, v24 offset:%d" % (L_CNT + 20))
            a("s_waitcnt vmcnt(%d) lgkmcnt(0)" % (PFW - 1))
            a("v_readfirstlane_b32 s%d, v25" % sT2)
            a("s_cmp_ge_u32 s%d, 1" % sT2)
            a("s_cbranch_scc1 L_lgq")
            a("s_mov_b32 exec_hi, 0")
            a("buffer_load_dword v34, v35, s[%d:%d], s%d offen %s" % (rKV, rKV + 3, sT0, pfpol))
            a("s_mov_b32 exec_hi, -1")
            a("s_add_u32 s%d, s%d, 0x8000" % (sT0, sT0))
    lds_wait(L_CNT + 20, 1, "q", 24, 25)
    a("ds_read_b128 v[%d:%d], v0 offset:%d" % (vQ, vQ + 3, L_QF))
    a("s_waitcnt lgkmcnt(0)")
    stamp("q")
    vPa, vPb, vR0, vR1, vT0_, vT1_, vU0, vU1, vK, vSd = range(24, 34)
    def kcompute(n, r, sdst=None):
        P = vPa if n % 2 == 0 else vPb
        for d in range(4):
            a("v_dot2_f32_bf16 v%d, v%d, v%d, %s" % (P, r + d, vQ + d, "0" if d == 0 else "v%d" % P))
        if n % 2 == 1:
            Rr = vR0 if (n >> 1) % 2 == 0 else vR1
            a("v_add_f32_dpp v%d, v%d, v%d row_ror:8 row_mask:0xf bank_mask:0x3" % (Rr, vPa, vPa))
            a("v_add_f32_dpp v%d, v%d, v%d row_ror:8 row_mask:0xf bank_mask:0xc" % (Rr, vPb, vPb))
        if n % 4 == 3:
            Tt = vT0_ if (n >> 2) % 2 == 0 else vT1_
            a("v_add_f32_dpp v%d, v%d, v%d row_shl:4 row_mask:0xf bank_mask:0x5" % (Tt, vR0, vR0))
            a("v_add_f32_dpp v%d, v%d, v%d row_shr:4 row_mask:0xf bank_mask:0xa" % (Tt, vR1, vR1))
        if n % 8 == 7:
            U = vU0 if (n >> 3) == 0 else vU1
            a("v_cndmask_b32 v%d, v%d, v%d, s[%d:%d]" % (vK, vT0_, vT1_, sM2, sM2 + 1))
            a("v_cndmask_b32 v%d, v%d, v%d, s[%d:%d]" % (vSd, vT1_, vT0_, sM2, sM2 + 1))
            a("v_add_f32_dpp v%d, v%d, v%d quad_perm:[2,3,0,1] row_mask:0xf bank_mask:0xf" % (U, vSd, vK))
        if n == 15:
            a("v_cndmask_b32 v%d, v%d, v%d, s[%d:%d]" % (vK, vU0, vU1, sM1, sM1 + 1))
            a("v_cndmask_b32 v%d, v%d, v%d, s[%d:%d]" % (vSd, vU1, vU0, sM1, sM1 + 1))
            if sdst is None:
                for t in range(7):
                    a("v_mov_b32 v%d, v%d" % (vS + t, vS + t + 1))
            a("v_add_f32_dpp v%d, v%d, v%d quad_perm:[1,0,3,2] row_mask:0xf bank_mask:0xf" % (vK, vSd, vK))
            rbf(vK, vK)
            a("v_mul_f32 v%d, 0x%x, v%d" % (vK, SCALE, vK))
            rbf(vS + 7 if sdst is None else sdst, vK)
    def sreg(g): return (16, 17, 18, 19, 12, 13, 14, 15)[g]
    early = list(early)[:LA]
    assert len(early) == LA
    issued_new = 0
    PMAX = max(PLA, PW2 or 0)
    consumed = set()
    for m in range(PR):
        cnt = PR - 1 - m + issued_new
        if cnt < PMAX + LA:
            a("s_waitcnt vmcnt(%d)" % cnt)
        kcompute(m % 16, preg(m), sreg(m // 16))
        consumed.add(preg(m))
        if m in early:
            assert vRing + 4 * ((PR + issued_new) % 16) in consumed
            issue(PR + issued_new, True); issued_new += 1
    assert issued_new == LA
    stamp("backlog")
    make_masks(34, 35)
    part_addr(vPA, 34, sWAVE)
    wo_setup(34)
    a("v_lshrrev_b32 v34, 4, v%d" % vLane)
    a("v_mul_u32_u24 v%d, %d, v34" % (vPR, PG))
    a("s_mul_i32 s%d, s%d, %d" % (sT2, sWAVE, 4 * PG))
    a("v_add_u32 v%d, s%d, v%d" % (vPR, sT2, vPR))
    a("v_bfrev_b32 v34, v%d" % vLane)
    a("v_lshrrev_b32 v34, 26, v34")
    a("v_and_b32 v34, 60, v34")
    a("v_add_u32 v%d, v%d, v34" % (vPW, vPR))
    def set_class():
        a("s_cmp_lt_u32 s2, 72")
        a("s_cselect_b64 vcc, -1, 0")
    def adapt():
        a("s_waitcnt lgkmcnt(0)")
        a("s_sub_u32 s%d, s%d, s%d" % (sT2, sTS, sDL))
        a("s_cmp_gt_i32 s%d, 0" % sT2)
        a("s_cselect_b64 vcc, -1, 0")
        a("s_add_u32 s%d, s%d, %d" % (sDL, sDL, ad[1]))
    def publish(tag):
        a("s_cmp_eq_u32 s%d, 0" % sISR)
        a("s_cbranch_scc1 L_np%s" % tag)
        a("s_cmp_lg_u32 s%d, 0" % sWAVE)
        a("s_cbranch_scc1 L_np%s" % tag)
        a("s_lshl2_add_u32 s%d, s%d, s%d" % (sT2, sISR, sEO))
        a("s_sub_u32 s%d, s%d, 4" % (sT2, sT2))
        a("s_mov_b32 s%d, s%d" % (sT3, sMS))
        a("s_atomic_swap s%d, s[%d:%d], s%d" % (sT3, sWS, sWS + 1, sT2))
        a.label("L_np%s" % tag)
    def refload():
        a("s_load_dwordx4 s[%d:%d], s[%d:%d], s%d" % (sREF, sREF + 3, sWS, sWS + 1, sEO))
    if RC or CC: a("s_mov_b32 s%d, 0x%x" % (sEO, WS_RT))
    def wait3(f, par=0):
        c = [f(CC[0]), f(CC[1]), f(CC[2])]
        if CH: c = [f((lv + (par & 1)) >> 1) for lv in CH]
        lab[0] += 1
        if c[1] != c[2]: a("s_cbranch_vccnz L_wb%d" % lab[0])
        if c[0] != c[1]:
            a("s_cmp_lg_u32 s%d, 0" % sMODE)
            a("s_cbranch_scc1 L_wm%d" % lab[0])
            a("s_waitcnt vmcnt(%d)" % c[0])
            a.label("L_wm%d" % lab[0])
        a("s_waitcnt vmcnt(%d)" % c[1])
        if c[1] != c[2]:
            a.label("L_wb%d" % lab[0])
            a("s_waitcnt vmcnt(%d)" % c[2])
    def cload():
        a("s_sub_u32 s%d, s%d, 256" % (sT2, sEO))
        a("s_load_dword s%d, s[%d:%d], s%d" % (sREF, sWS, sWS + 1, sT2))
    def ctl(step, fresh, tag):
        lab[0] += 1
        a("s_cmp_lg_u32 s%d, 0" % sRB)
        a("s_cselect_b32 s%d, %s, 0" % (sT2, step))
        a("s_add_u32 s%d, s%d, s%d" % (sRB, sRB, sT2))
        if fresh is not None:
            a("s_sub_u32 s%d, s%d, s%d" % (sT3, sREF, sST0))
            a("s_add_u32 s%d, s%d, %s" % (sT2, sREF, fresh))
            a("s_cmp_lt_u32 s%d, 0x8000" % sT3)
            a("s_cselect_b32 s%d, s%d, s%d" % (sRB, sT2, sRB))
        a("s_sub_u32 s%d, s%d, s%d" % (sT2, sTS, sRB))
        a("s_cmp_eq_u32 s%d, 0" % sRB)
        a("s_cselect_b32 s%d, 0, s%d" % (sT2, sT2))
        a("s_cmp_lg_u32 s%d, 0" % sISR)
        a("s_cselect_b32 s%d, 0, s%d" % (sT2, sT2))
        a("s_cmp_gt_i32 s%d, %d" % (sT2, CC[4]))
        a("s_cselect_b64 vcc, -1, 0")
        a("s_cmp_gt_i32 s%d, %d" % (sT2, CC[3]))
        a("s_cselect_b32 s%d, 1, 0" % sMODE)
    if CC:
        a("s_mov_b64 vcc, 0")
        a("s_mov_b32 s%d, 1" % sMODE)
    ops = ["K%d" % i for i in range(PR, PR + LA)]
    wosteps = [WS0 + ((WS1 - WS0) * k) // 16 for k in range(16)]
    wi = 0
    for m in range(PR, 128):
        if m == 64: stamp("trk")
        if RC and m == 111: a("s_memrealtime s[%d:%d]" % (sTS, sTS + 1))
        if RC and m == 112:
            a("s_waitcnt lgkmcnt(0)")
            a("s_mov_b32 s%d, s%d" % (sMS, sTS))
            publish("k")
        if RC and m == 121: refload()
        if CC:
            G0 = CC[9]; TK = CC[6]
            if m >= 16 * G0 - 1:
                if m % 8 == 7: a("s_memrealtime s[%d:%d]" % (sTS, sTS + 1))
                if m % 8 == 0:
                    a("s_waitcnt lgkmcnt(0)")
                    if m % 16 == 0:
                        if m > 16 * G0: ctl(str(TK // 2), None, "")
                        a("s_mov_b32 s%d, s%d" % (sMS, sTS))
                        publish("k%d" % m)
                        if m > 16 * G0: cload()
                        a("s_add_u32 s%d, s%d, 256" % (sEO, sEO))
                    elif m > 16 * G0 + 8:
                        ctl(str(TK // 2), str(TK + TK // 2), "")
        req = len(ops) - 1 - ops.index("K%d" % m)
        def allowed(w):
            k = 0; n_ = 0
            for o in reversed(ops):
                if o != "W":
                    if k == w - 1: break
                    k += 1
                elif not KX:
                    if k == w - 1: break
                    k += 1; n_ -= 0
                n_ += 1
            return min(req, n_)
        if CC and m >= 16 * CC[9] + 24: wait3(allowed, m)
        else: wait2(allowed(KW[0]), allowed(KW[0]))
        if m in wosteps:
            wo_load(wi); ops.append("W"); wi += 1
        issue(m + LA, True); ops.append("K%d" % (m + LA))
        kcompute(m % 16, vRing + 4 * (m % 16), sreg(m // 16))
    assert wi == 16 and max(wosteps) <= 127 - LA
    vnext = [LA]
    def vhook():
        if SMI and vnext[0] < 16:
            a("s_waitcnt vmcnt(%d)" % (SW - 1))
            issue(vnext[0], False); vnext[0] += 1
    if not SMI:
        for n in range(LA, VT):
            issue(n, False)
    stamp("kdone")
    vhook()
    vm = vT
    a("v_max3_f32 v%d, v%d, v%d, v%d" % (vm, vS, vS + 1, vS + 2))
    a("v_max3_f32 v%d, v%d, v%d, v%d" % (vm, vm, vS + 3, vS + 4))
    a("v_max3_f32 v%d, v%d, v%d, v%d" % (vm, vm, vS + 5, vS + 6))
    a("v_max_f32 v%d, v%d, v%d" % (vm, vm, vS + 7))
    wave_reduce("v_max_f32", vm, sT2)
    vhook()
    for t in range(8):
        a("v_subrev_f32 v%d, s%d, v%d" % (vT + 2 + t, sT2, vS + t))
    for t in range(8):
        a("v_mul_f32 v%d, 0x%x, v%d" % (vT + 2 + t, LOG2E, vT + 2 + t))
    for t in range(8):
        a("v_exp_f32 v%d, v%d" % (vT + 2 + t, vT + 2 + t))
    a("v_add_f32 v%d, v%d, v%d" % (vT + 1, vT + 2, vT + 3))
    for t in range(2, 8):
        a("v_add_f32 v%d, v%d, v%d" % (vT + 1, vT + 1, vT + 2 + t))
    wave_reduce("v_add_f32", vT + 1, sT3)
    a("v_mov_b32 v%d, s%d" % (vT + 2, sT2)); a("v_mov_b32 v%d, s%d" % (vT + 3, sT3))
    a("s_lshl_b32 s%d, s%d, 3" % (sT2, sWAVE))
    a("v_mov_b32 v%d, s%d" % (vT + 4, sT2))
    a("v_mov_b32 v%d, 0" % (vT + 6)); a("v_mov_b32 v%d, 1" % (vT + 7))
    a("s_mov_b64 exec, 1")
    a("ds_write_b64 v%d, v[%d:%d] offset:%d" % (vT + 4, vT + 2, vT + 3, L_ST))
    a("ds_add_u32 v%d, v%d offset:%d" % (vT + 6, vT + 7, L_CNT + 12))
    a("s_mov_b64 exec, -1")
    a("v_and_b32 v%d, 7, v%d" % (vT + 5, vLane))
    a("v_lshlrev_b32 v%d, 3, v%d" % (vT + 5, vT + 5))
    assert vnext[0] + 2 <= 12 and VT <= 12
    wo_transpose(vhook)
    vhook()
    lds_wait(L_CNT + 12, 8, "sm", vT + 6, vT + 7, 0)
    stamp("B2")
    vhook()
    a("ds_read_b64 v[%d:%d], v%d offset:%d" % (vT + 2, vT + 3, vT + 5, L_ST))
    a("s_waitcnt lgkmcnt(0)")
    vMx = vT + 4
    a("v_max_f32_dpp v%d, v%d, v%d row_ror:4 row_mask:0xf bank_mask:0xf" % (vMx, vT + 2, vT + 2))
    a("v_max_f32_dpp v%d, v%d, v%d row_ror:2 row_mask:0xf bank_mask:0xf" % (vMx, vMx, vMx))
    a("v_max_f32_dpp v%d, v%d, v%d row_ror:1 row_mask:0xf bank_mask:0xf" % (vMx, vMx, vMx))
    a("v_sub_f32 v%d, v%d, v%d" % (vT + 2, vT + 2, vMx))
    for t in range(8):
        a("v_sub_f32 v%d, v%d, v%d" % (vS + t, vS + t, vMx))
    a("v_mul_f32 v%d, 0x%x, v%d" % (vT + 2, LOG2E, vT + 2))
    for t in range(8):
        a("v_mul_f32 v%d, 0x%x, v%d" % (vS + t, LOG2E, vS + t))
    a("v_exp_f32 v%d, v%d" % (vT + 2, vT + 2))
    for t in range(8):
        a("v_exp_f32 v%d, v%d" % (vS + t, vS + t))
    a("v_mul_f32 v%d, v%d, v%d" % (vT + 2, vT + 2, vT + 3))
    for r in (4, 2, 1):
        a("v_add_f32_dpp v%d, v%d, v%d row_ror:%d row_mask:0xf bank_mask:0xf" % (vT + 2, vT + 2, vT + 2, r))
    vhook()
    a("v_rcp_f32 v%d, v%d" % (vT + 3, vT + 2))
    for t in range(8):
        div1(vT + 4, sreg(t), vT + 2, vT + 3, vT + 5)
        a("v_cvt_pk_bf16_f32 v%d, v%d, v%d" % (vT + 6 + (t % 2), vT + 4, vT + 4))
        a("ds_write_b32 v%d, v%d offset:%d" % (vPW, vT + 6 + (t % 2), L_P + 64 * t))
    if not (RC or CC): a("ds_read_b128 v[%d:%d], v%d offset:%d" % (vP0, vP0 + 3, vPR, L_P))
    for r in range(4):
        a("v_mov_b32 v%d, 0" % (vAcc + r))
    vhook()
    tail_prep("ta")
    if SMI: VT = vnext[0]
    stamp("sm")
    a("; ---- V phase")
    if CW:
        a("s_cmp_eq_u32 s%d, 31" % sH)
        a("s_cselect_b64 s[%d:%d], -1, 0" % (sM1, sM1 + 1))
        a("s_or_b64 vcc, vcc, s[%d:%d]" % (sM1, sM1 + 1))
    a("s_mov_b32 s%d, 0" % sCNT)
    if ad: a("s_memrealtime s[%d:%d]" % (sTS, sTS + 1))
    def vbody(first_skip, w, tagname):
        for n in range(16):
            Pc = vP0 if (n >> 2) % 2 == 0 else vP1
            Pn = vP1 if (n >> 2) % 2 == 0 else vP0
            if CC and n == 8:
                a("s_waitcnt lgkmcnt(0)")
                ctl(str(CC[7] // 2), "s%d" % sT0, "")
            if RC or CC:
                Pc = (8, 12, 16, 32)[n >> 2]
            elif n % 4 == 0:
                a("s_waitcnt lgkmcnt(0)")
                a("ds_read_b128 v[%d:%d], v%d offset:%d" % (Pn, Pn + 3, vPR, L_P + 4 * n + 16))
            A = vA0 if n % 2 == 0 else vA1
            for r in range(4):
                a("v_and_b32 v%d, v%d, v%d" % (A + r, Pc + (n % 4), vM + r))
            if CC: wait3(lambda w_: w_ - 1, n)
            else: wait2(w[0] - 1, w[1] - 1)
            if first_skip and n < VT - LA:
                a("s_cmp_eq_u32 s%d, 0" % sCNT)
                a("s_cbranch_scc1 L_vsk%s%d" % (tagname, n))
            issue(n + LA, False)
            if first_skip and n < VT - LA:
                a.label("L_vsk%s%d" % (tagname, n))
            if CC and n in (7, 15): a("s_memrealtime s[%d:%d]" % (sTS, sTS + 1))
            if RC and n == 9: refload()
            if (ad or V3 or RC) and n == 14: a("s_memrealtime s[%d:%d]" % (sTS, sTS + 1))
            mfma(vAcc, A, vRing + 4 * (n % R), False)
        a("v_add_u32 v%d, 64, v%d" % (vPR, vPR))
        a("s_add_u32 s%d, s%d, 1" % (sCNT, sCNT))
    if VB:
        a("s_cmp_ge_u32 s%d, %d" % (sB, VB[0]))
        a("s_cbranch_scc0 L_vA")
        a("s_cmp_lt_u32 s%d, %d" % (sB, VB[1]))
        a("s_cbranch_scc0 L_vA")
        cur["pol"] = ""
        a.label("L_vB")
        vbody(True, VW, "x")
        a("s_cmp_lt_u32 s%d, 8" % sCNT)
        a("s_cbranch_scc1 L_vB")
        a("s_branch L_vE")
        cur["pol"] = pol
        a.label("L_vA")
        vbody(True, VW, "y")
        a("s_cmp_lt_u32 s%d, 8" % sCNT)
        a("s_cbranch_scc1 L_vA")
        a.label("L_vE")
    elif CC:
        a("s_memrealtime s[%d:%d]" % (sTS, sTS + 1))
        a("s_mov_b32 s%d, %d" % (sT1, CC[6] // 2 + CC[8]))
        a("s_mov_b32 s%d, %d" % (sT0, CC[6] + CC[8] + CC[7] // 2))
        a.label("L_vloop")
        for k, pr in enumerate((8, 12, 16, 32)):
            a("ds_read_b128 v[%d:%d], v%d offset:%d" % (pr, pr + 3, vPR, L_P + 16 * k))
        a("s_waitcnt lgkmcnt(0)")
        ctl("s%d" % sT1, None, "")
        a("s_mov_b32 s%d, s%d" % (sMS, sTS))
        a("s_cmp_eq_u32 s%d, 7" % sCNT)
        a("s_cbranch_scc1 L_npv")
        publish("v")
        cload()
        a("s_add_u32 s%d, s%d, 256" % (sEO, sEO))
        vbody(True, None, "c")
        a("s_mov_b32 s%d, %d" % (sT1, CC[7] // 2))
        a("s_mov_b32 s%d, %d" % (sT0, CC[7] + CC[7] // 2))
        a("s_cmp_lt_u32 s%d, 8" % sCNT)
        a("s_cbranch_scc1 L_vloop")
    elif RC:
        a("s_memrealtime s[%d:%d]" % (sTS, sTS + 1))
        a.label("L_vloop")
        a("s_cmp_ge_u32 s%d, 8" % sCNT)
        a("s_cbranch_scc1 L_vend")
        for k, pr in enumerate((8, 12, 16, 32)):
            a("ds_read_b128 v[%d:%d], v%d offset:%d" % (pr, pr + 3, vPR, L_P + 16 * k))
        a("s_waitcnt lgkmcnt(0)")
        a("s_mov_b32 s%d, -100000" % sT0)
        if RT:
            a("s_cmp_eq_u32 s%d, 0" % sCNT)
            a("s_cselect_b32 s%d, %d, %d" % (sMS, RT[0], RT[1])) if False else None
            a("s_mov_b32 s%d, %d" % (sMS, RT[1]))
            a("s_cselect_b32 s%d, %d, s%d" % (sMS, RT[0], sMS))
            a("s_sub_u32 s%d, s%d, s%d" % (sMS, sTS, sMS))
        for r_ in range(len(RC[5])):
            a("s_sub_u32 s%d, s%d, s%d" % (sT2, sMS, sREF + r_))
            a("s_sub_u32 s%d, s%d, s%d" % (sT3, sREF + r_, sST0))
            a("s_cmp_ge_u32 s%d, 0x100000" % sT3)
            a("s_cselect_b32 s%d, s%d, s%d" % (sT2, sT0, sT2))
            a("s_max_i32 s%d, s%d, s%d" % (sT0, sT0, sT2))
        a("s_mov_b32 s%d, s%d" % (sMS, sTS))
        a("s_add_u32 s%d, s%d, 256" % (sEO, sEO))
        a("s_cmp_eq_u32 s%d, 7" % sCNT)
        a("s_cbranch_scc1 L_npv")
        publish("v")
        a("s_cmp_lg_u32 s%d, 0" % sISR)
        a("s_cbranch_scc1 L_vmid")
        a("s_cmp_gt_i32 s%d, %d" % (sT0, RC[4]))
        a("s_cbranch_scc1 L_vbig")
        a("s_cmp_gt_i32 s%d, %d" % (sT0, RC[3]))
        a("s_cbranch_scc1 L_vmid")
        vbody(True, (RC[0], RC[0]), "s")
        a("s_branch L_vloop")
        a.label("L_vmid")
        vbody(True, (RC[1], RC[1]), "m")
        a("s_branch L_vloop")
        a.label("L_vbig")
        vbody(True, (RC[2], RC[2]), "b")
        a("s_branch L_vloop")
        a.label("L_vend")
    elif V3:
        a("s_memrealtime s[%d:%d]" % (sTS, sTS + 1))
        if V3[3] == 0:
            a("s_waitcnt lgkmcnt(0)")
            a("s_sub_u32 s%d, s%d, 1" % (sDL, sTS))
        a.label("L_vloop")
        a("s_cmp_ge_u32 s%d, 8" % sCNT)
        a("s_cbranch_scc1 L_vend")
        a("s_waitcnt lgkmcnt(0)")
        a("s_sub_u32 s%d, s%d, s%d" % (sT2, sTS, sDL))
        a("s_add_u32 s%d, s%d, %d" % (sDL, sDL, V3[4]))
        a("s_cmp_gt_i32 s%d, %d" % (sT2, V3[5]))
        a("s_cbranch_scc1 L_vbig")
        a("s_cmp_gt_i32 s%d, 0" % sT2)
        a("s_cbranch_scc1 L_vmid")
        vbody(True, (V3[0], V3[0]), "s")
        a("s_branch L_vloop")
        a.label("L_vmid")
        vbody(True, (V3[1], V3[1]), "m")
        a("s_branch L_vloop")
        a.label("L_vbig")
        vbody(True, (V3[2], V3[2]), "b")
        a("s_branch L_vloop")
        a.label("L_vend")
    else:
        a.label("L_vloop")
        if ad: adapt()
        vbody(True, VW, "a")
        a("s_cmp_lt_u32 s%d, %d" % (sCNT, 8 - EN))
        a("s_cbranch_scc1 L_vloop")
        if EN:
            a.label("L_vloop2")
            vbody(False, (EW, EW), "b")
            a("s_cmp_lt_u32 s%d, 8" % sCNT)
            a("s_cbranch_scc1 L_vloop2")
    a("s_waitcnt lgkmcnt(0)")
    a("ds_write_b128 v%d, v[%d:%d] offset:%d" % (vPA, vAcc, vAcc + 3, L_OP))
    if tprio is not None: a("s_setprio %d" % tprio)
    stamp("vdone")
    a.label("L_tail")
    a("s_waitcnt lgkmcnt(0)")
    a("s_barrier")
    stamp("B3")
    for w in range(8):
        a("ds_read_b64 v[%d:%d], v38 offset:%d" % (8 + 2 * w, 9 + 2 * w, L_OP + 512 * w))
    a("s_waitcnt lgkmcnt(4)")
    a("v_pk_add_f32 v[8:9], v[8:9], v[10:11]")
    a("v_pk_add_f32 v[12:13], v[12:13], v[14:15]")
    a("s_waitcnt lgkmcnt(0)")
    a("v_pk_add_f32 v[16:17], v[16:17], v[18:19]")
    a("v_pk_add_f32 v[20:21], v[20:21], v[22:23]")
    a("v_pk_add_f32 v[8:9], v[8:9], v[12:13]")
    a("v_pk_add_f32 v[16:17], v[16:17], v[20:21]")
    a("v_pk_add_f32 v[8:9], v[8:9], v[16:17]")
    a("v_cvt_pk_bf16_f32 v8, v8, v9")
    for k in range(8):
        a("ds_bpermute_b32 v%d, v39, v8 offset:%d" % (24 + k, 128 * (k >> 2) + 4 * (k & 3)))
    vNB = 16
    nibs(vNB, 0)
    vD = 72
    a("s_waitcnt lgkmcnt(4)")
    for j in range(8):
        mfma(vD + 4 * j, 24, vW + 32 + 4 * j, True)
    a("s_waitcnt lgkmcnt(0)")
    for j in (0, 4, 1, 5, 2, 6, 3, 7):
        mfma(vD + 4 * j, 28, vW + 4 * j, False)
    for e in range(4):
        a("v_cndmask_b32 v%d, v%d, v%d, s[%d:%d]" % (20 + e, vD + 4 * e, vD + 4 * (e + 4), sM1, sM1 + 1))
    for e in range(4):
        a("v_permlane32_swap_b32 v%d, v%d" % (20 + e, 12 + e))
    for e in range(4):
        a("v_add_f32_dpp v%d, v%d, v%d row_shl:8 row_mask:0xf bank_mask:0x3" % (20 + e, 12 + e, 20 + e))
    for e in range(4):
        a("v_bfi_b32 v%d, 15, v%d, v%d" % (20 + e, vNB + e, 20 + e))
    a("s_mov_b64 exec, 0x00ff00ff")
    a("buffer_store_dwordx4 v[20:23], v3, s[%d:%d], s%d offen %s" % (rWS, rWS + 3, sPUB, stpol))
    a("s_mov_b64 exec, -1")
    stamp("pub")
    is_consumer()
    a("s_cbranch_scc1 L_fin")
    t0, t1, t4, t5, t6 = 8, 9, 12, 13, 14
    SETS = [40, 104, 136][:NSET]
    a("v_lshrrev_b32 v%d, 4, v%d" % (t0, vLane))
    a("v_and_b32 v%d, 15, v%d" % (t1, vLane))
    a("v_mul_u32_u24 v%d, 2304, v%d" % (t0, t0))
    a("v_lshl_add_u32 v%d, v%d, 4, v%d" % (t0, t1, t0))
    a("s_mul_i32 s%d, s%d, %d" % (sT2, sB, 32 * 2304))
    a("s_add_u32 s%d, s%d, s%d" % (sT2, sT2, sU))
    def gather_issue(G):
        a("s_mov_b32 s%d, s%d" % (sT3, sT2))
        for i in range(8):
            a("buffer_load_dwordx4 v[%d:%d], v%d, s[%d:%d], s%d offen sc1" % (G + 4 * i, G + 3 + 4 * i, t0, rWS, rWS + 3, sT3))
            if i < 7: a("s_add_u32 s%d, s%d, %d" % (sT3, sT3, 4 * 2304))
    xfin_addr(t4, t5)
    a("v_lshlrev_b32 v%d, 2, v%d" % (t5, t4))
    a("v_lshlrev_b32 v%d, 1, v%d" % (t4, t4))
    a("s_lshl_b32 s%d, s%d, 7" % (sT1, sUN))
    a("buffer_load_ushort v%d, v%d, s[%d:%d], s%d offen" % (vXf, t4, rA, rA + 3, sT1))
    if P0: a("s_sleep %d" % P0)
    gather_issue(SETS[0])
    a("v_add_u32 v%d, s%d, v%d" % (t5, sU, t5))
    a("ds_read_b32 v%d, v%d offset:%d" % (t6, t5, L_G))
    a("v_mov_b32 v10, 0")
    a("ds_read_b32 v15, v10 offset:%d" % (L_CNT + 16))
    a("s_mul_i32 s%d, s%d, 1152" % (sT0, sB))
    srd_off(rB, sOUT, sT0, 1160)
    a("s_mov_b32 s%d, 0" % sCNT)
    a("s_waitcnt lgkmcnt(0)")
    tag16(t5, 15, 0)
    nibs(vNB, t5)
    for G in SETS[1:]:
        a("s_sleep %d" % (10 // NSET))
        gather_issue(G)
    a.label("L_poll")
    for si, G in enumerate(SETS):
        a("s_waitcnt vmcnt(%d)" % (8 * (NSET - 1)))
        for k in range(4):
            for i in range(0, 8, 2):
                a("v_bitop3_b32 v%d, v%d, v%d, v%d bitop3:0x7e" % (24 + 4 * k + i // 2, G + 4 * i + k, G + 4 * i + 4 + k, vNB + k))
        for p_ in range(4):
            a("v_or3_b32 v%d, v%d, v%d, v%d" % (24 + p_, 24 + p_, 28 + p_, 32 + p_))
        for p_ in range(4):
            a("v_or_b32 v%d, v%d, v%d" % (24 + p_, 24 + p_, 36 + p_))
        a("v_or3_b32 v28, v24, v25, v26")
        a("v_or_b32 v28, v28, v27")
        a("v_and_b32 v28, 15, v28")
        a("v_cmp_ne_u32 vcc, 0, v28")
        a("s_cbranch_vccz L_got%d" % si)
        if PS: a("s_sleep %d" % PS)
        if not SEL:
            gather_issue(G)
        else:
            for p_ in range(4):
                a("v_and_b32 v28, 15, v%d" % (24 + p_))
                a("v_cmp_ne_u32 vcc, 0, v28")
                a("s_add_u32 s%d, s%d, %d" % (sT3, sT2, 8 * 2304 * p_))
                a("s_cbranch_vccz L_sk%d%d" % (si, p_))
                a("buffer_load_dwordx4 v[%d:%d], v%d, s[%d:%d], s%d offen sc1" % (G + 8 * p_, G + 8 * p_ + 3, t0, rWS, rWS + 3, sT3))
                a("s_add_u32 s%d, s%d, %d" % (sT3, sT3, 4 * 2304))
                a("buffer_load_dwordx4 v[%d:%d], v%d, s[%d:%d], s%d offen sc1" % (G + 8 * p_ + 4, G + 8 * p_ + 7, t0, rWS, rWS + 3, sT3))
                a.label("L_sk%d%d" % (si, p_))
    a("s_add_u32 s%d, s%d, 1" % (sCNT, sCNT))
    a("s_cmp_lt_u32 s%d, 0x100000" % sCNT)
    a("s_cbranch_scc1 L_poll")
    a("s_branch L_fin")
    def xreduce(g):
        a("v_permlane32_swap_b32 v%d, v%d" % (g, g + 1))
        a("v_permlane32_swap_b32 v%d, v%d" % (g + 2, g + 3))
        a("v_add_f32 v%d, v%d, v%d" % (g, g, g + 1))
        a("v_add_f32 v%d, v%d, v%d" % (g + 2, g + 2, g + 3))
        a("v_permlane16_swap_b32 v%d, v%d" % (g, g + 2))
        a("v_add_f32 v%d, v%d, v%d" % (g, g, g + 2))
    for si, G in reversed(list(enumerate(SETS))):
        a.label("L_got%d" % si)
        for k in range(32):
            a("v_and_b32 v%d, -16, v%d" % (G + k, G + k))
        for st in (16, 8, 4):
            for k in range(0, st, 2):
                d = G + k if st > 4 else 24 + k
                a("v_pk_add_f32 v[%d:%d], v[%d:%d], v[%d:%d]" % (d, d + 1, G + k, G + 1 + k, G + k + st, G + 1 + k + st))
        if si > 0: a("s_branch L_fsum")
    a.label("L_fsum")
    G = 24
    xreduce(G)
    a("v_lshlrev_b32 v%d, 16, v%d" % (vXf, vXf))
    rbf(G, G)
    a("v_mul_f32 v%d, v%d, v%d" % (G, G, t6))
    rbf(G, G)
    a("v_add_f32 v%d, v%d, v%d" % (G, G, vXf))
    a("v_cvt_pk_bf16_f32 v%d, v%d, v%d" % (G, G, G))
    a("buffer_store_short v%d, v%d, s[%d:%d], s%d offen" % (G, t4, rB, rB + 3, sT1))
    stamp("fin")
    a.label("L_fin")
    stamp_flush()
    a("s_endpgm")
    a.label("L_w")
    if wprio: a("s_setprio %d" % wprio)
    a("s_sub_u32 s%d, s%d, 8" % (sWK, sWAVE))
    a("v_mov_b32 v8, 0"); a("v_mov_b32 v9, 0"); a("v_mov_b32 v10, 0"); a("v_mov_b32 v11, 0")
    a("ds_write_b128 v8, v[8:11] offset:%d" % L_CNT)
    a("ds_write_b128 v8, v[8:11] offset:%d" % (L_CNT + 16))
    a("v_lshlrev_b32 v0, 1, v%d" % vLane)
    a("v_lshrrev_b32 v21, 4, v%d" % vLane)
    a("v_and_b32 v22, 15, v%d" % vLane)
    a("v_mul_u32_u24 v3, 0x%x, v21" % (36 * 8192))
    a("v_lshl_add_u32 v3, v22, 4, v3")
    a("s_mul_i32 s%d, s%d, 0x%x" % (sT2, sWK, 144 * 8192))
    a("s_waitcnt lgkmcnt(0)")
    a("s_barrier")
    a("s_or_b32 s%d, s2, s%d" % (sT3, sWK))
    a("s_cmp_lg_u32 s%d, 0" % sT3)
    a("s_cbranch_scc1 L_wni")
    a("s_memrealtime s[%d:%d]" % (sTS, sTS + 1))
    a("s_waitcnt lgkmcnt(0)")
    a("s_or_b32 s%d, s%d, 1" % (sT3, sTS))
    a("v_mov_b32 v10, s%d" % sT3)
    a("s_mov_b64 exec, 1")
    a("global_atomic_cmpswap v8, v[10:11], s[%d:%d] sc1" % (sDBG, sDBG + 1))
    a("s_mov_b64 exec, -1")
    a("s_nop 1")
    a.label("L_wni")
    srd_off(rA, sX, sT0, 1160)
    vX = 12
    a("buffer_load_dwordx4 v[8:11], v%d, s[%d:%d], 0 offen nt" % (vOff16, rA, rA + 3))
    a("buffer_load_ushort v20, v0, s[%d:%d], 0 offen offset:1024 nt" % (rA, rA + 3))
    srd_off(rB, sWQ, sT1, "s_sub_u32 s%%d, 0x%x, s%d" % (576 * 8192, sT1))
    vWQ = 24
    NWR = 10
    assert WQ0 < NWR
    if nowq: a("s_mov_b32 s%d, 0x70000000" % sT2)
    a("s_mov_b32 s%d, s%d" % (sWOFF, sT2))
    def wq_load(i):
        r = vWQ + 4 * (i % NWR)
        a("buffer_load_dwordx4 v[%d:%d], v2, s[%d:%d], s%d offen %s" % (r, r + 3, rB, rB + 3, sWOFF, wqpol))
        if i < 35: a("s_add_u32 s%d, s%d, 0x2000" % (sWOFF, sWOFF))
    a("v_mov_b32 v2, v3")
    if WQPF:
        a("v_lshrrev_b32 v23, 1, v%d" % vLane)
        a("v_and_b32 v22, 1, v%d" % vLane)
        a("v_lshlrev_b32 v23, 13, v23")
        a("v_lshl_add_u32 v23, v22, 7, v23")
        a("s_mul_i32 s%d, s%d, 72" % (sT3, sB))
        a("s_mul_i32 s%d, s%d, 18" % (sT2, sWK))
        a("s_add_u32 s%d, s%d, s%d" % (sT3, sT3, sT2))
        a("s_lshl_b32 s%d, s%d, 13" % (sT3, sT3))
        a("s_mov_b32 exec_hi, 15")
        a("buffer_load_dword v71, v23, s[%d:%d], s%d offen %s" % (rB, rB + 3, sT3, pfpol))
        a("s_mov_b32 exec_hi, -1")
    else:
        for i in range(WQ0):
            wq_load(i)
    vACC = 32; vTB = 24; vZ = 64; vXR = 24; vAF = 8; vWO = 68
    STB = (104, 136, 72)
    sROLE, sIDX, sSTR, sBST = sM1, sM1 + 1, sVlo, sVhi
    a("s_add_u32 s%d, s%d, %d" % (sROLE, sJ, JROT))
    a("s_and_b32 s%d, s%d, 31" % (sROLE, sROLE))
    if nomlp: a("s_mov_b32 s%d, 31" % sROLE)
    a("v_and_b32 v69, 7, v%d" % vLane)
    a("v_lshrrev_b32 v70, 3, v%d" % vLane)
    a("s_cmp_eq_u32 s%d, 0" % sWK)
    a("s_cbranch_scc1 L_ns0")
    a("s_cmp_ge_u32 s%d, 18" % sROLE)
    a("s_cbranch_scc1 L_ns2")
    a("s_sub_u32 s%d, s%d, 9" % (sIDX, sROLE))
    a("s_cmp_lt_u32 s%d, 9" % sROLE)
    a("s_cselect_b32 s%d, s%d, s%d" % (sIDX, sROLE, sIDX))
    a("s_cselect_b32 s%d, s%d, s%d" % (sT2, sW1, sW3))
    a("s_cselect_b32 s%d, s%d, s%d" % (sT3, sW1 + 1, sW3 + 1))
    a("s_mul_i32 s%d, s%d, 9" % (sT0, sXG))
    a("s_add_u32 s%d, s%d, s%d" % (sIDX, sIDX, sT0))
    a("s_lshl_b32 s%d, s%d, 7" % (sT0, sIDX))
    a("s_add_u32 s%d, s%d, s%d" % (rKV, sT2, sT0))
    a("s_addc_u32 s%d, s%d, 0" % (rKV + 1, sT3))
    a("s_sub_u32 s%d, 0x%x, s%d" % (rKV + 2, 576 * 9216, sT0))
    a("s_mov_b32 s%d, 9216" % sSTR)
    a("s_mov_b32 s%d, %d" % (sBST, 57 * 9216))
    a("s_mov_b32 s%d, %d" % (sT1, 8 * 9216))
    a("s_branch L_nsj")
    a.label("L_ns2")
    a("s_sub_u32 s%d, s%d, 18" % (sIDX, sROLE))
    a("s_mul_i32 s%d, s%d, %d" % (sT0, sXG, 576 * 1152))
    a("s_lshl_b32 s%d, s%d, 7" % (sT1, sIDX))
    a("s_add_u32 s%d, s%d, s%d" % (sT0, sT0, sT1))
    a("s_cmp_ge_u32 s%d, 27" % sROLE)
    a("s_cselect_b32 s%d, 0, s%d" % (sT0, sT0))
    a("s_cselect_b32 s%d, 0, 0x%x" % (sT1, 4608 * 1152))
    a("s_add_u32 s%d, s%d, s%d" % (rKV, sW2, sT0))
    a("s_addc_u32 s%d, s%d, 0" % (rKV + 1, sW2 + 1))
    a("s_sub_u32 s%d, s%d, s%d" % (rKV + 2, sT1, sT0))
    a("s_mov_b32 s%d, 1152" % sSTR)
    a("s_mov_b32 s%d, %d" % (sBST, 57 * 1152))
    a("s_mov_b32 s%d, %d" % (sT1, 8 * 1152))
    a.label("L_nsj")
    if 'l' in mno: a("s_mov_b32 s%d, 0" % (rKV + 2))
    a("s_sub_u32 s%d, s%d, 1" % (sT2, sWK))
    a("s_mul_i32 s%d, s%d, 192" % (sT2, sT2))
    a("s_mul_i32 s%d, s%d, s%d" % (sOFF, sT2, sSTR))
    a("s_branch L_nse")
    a.label("L_ns0")
    a("s_mul_i32 s%d, s%d, 0x%x" % (sT0, sH, 128 * 1152))
    a("s_add_u32 s%d, s%d, 1024" % (sT0, sT0))
    a("s_add_u32 s%d, s%d, s%d" % (rKV, sWO, sT0))
    a("s_addc_u32 s%d, s%d, 0" % (rKV + 1, sWO + 1))
    a("s_sub_u32 s%d, 0x%x, s%d" % (rKV + 2, 4096 * 1152, sT0))
    if nowo: a("s_mov_b32 s%d, 0" % (rKV + 2))
    a("s_mov_b32 s%d, 1152" % sSTR)
    a("s_mov_b32 s%d, %d" % (sBST, 57 * 1152))
    a("s_mov_b32 s%d, %d" % (sT1, 8 * 1152))
    a("s_mov_b32 s%d, 0" % sOFF)
    a.label("L_nse")
    a("s_mov_b32 s%d, 0x20000" % (rKV + 3))
    a("v_mul_lo_u32 v%d, v70, s%d" % (vWO, sT1))
    a("v_lshl_add_u32 v%d, v69, 4, v%d" % (vWO, vWO))
    def ns_load(k, pace=None):
        r = STB[k // 8] + 4 * (k % 8)
        if pace is not None: a("s_waitcnt vmcnt(%d)" % (pace - 1))
        a("buffer_load_dwordx4 v[%d:%d], v%d, s[%d:%d], s%d offen %s" % (r, r + 3, vWO, rKV, rKV + 3, sOFF, mpol))
        a("s_add_u32 s%d, s%d, s%d" % (sOFF, sOFF, sSTR if k % 8 < 7 else sBST))
    stamp("issued")
    common_setup()
    make_masks(22, 23)
    a("s_mul_i32 s%d, s%d, 2304" % (sT2, sWK))
    a("v_lshl_add_u32 v3, v%d, 5, s%d" % (vLane, sT2))
    a("s_mul_i32 s%d, s%d, 2880" % (sT3, sWK))
    a("v_mul_u32_u24 v0, 144, v21")
    a("v_add_u32 v0, s%d, v0" % sT3)
    a("s_waitcnt vmcnt(%d)" % (1 if WQPF else WQ0))
    for k in range(4):
        a("v_lshlrev_b32 v%d, 16, v%d" % (vX + 2 * k, 8 + k))
        a("v_and_b32 v%d, 0xffff0000, v%d" % (vX + 2 * k + 1, 8 + k))
    a("v_lshlrev_b32 v20, 16, v20")
    vs = 8
    a("v_add_f32 v%d, v%d, v%d" % (vs, vX, vX + 1))
    for t in range(2, 9):
        a("v_add_f32 v%d, v%d, v%d" % (vs, vs, vX + t))
    wave_reduce("v_add_f32", vs, sT3)
    vmean = 9
    a("v_mov_b32 v%d, 0x%x" % (vmean, INV576))
    a("v_mul_f32 v%d, s%d, v%d" % (vmean, sT3, vmean))
    a("v_sub_f32 v10, v%d, v%d" % (vX, vmean))
    a("v_mul_f32 v%d, v10, v10" % vs)
    for t in range(1, 9):
        a("v_sub_f32 v10, v%d, v%d" % (vX + t, vmean))
        a("v_fmac_f32 v%d, v10, v10" % vs)
    wave_reduce("v_add_f32", vs, sT3)
    a("v_mov_b32 v10, 0x%x" % INV576)
    a("v_mul_f32 v10, s%d, v10" % sT3)
    ln_scalars(vmean, 10, 8, 11, 21)
    for t in range(9):
        a("v_sub_f32 v%d, v%d, v8" % (vX + t, vX + t))
    for t in range(9):
        rbf(vX + t, vX + t)
    for t in range(9):
        div1(9, vX + t, 11, 21, 10)
        a("v_cvt_pk_bf16_f32 v%d, v9, v9" % (vX + t))
    a("ds_write_b128 v3, v[12:15] offset:%d" % L_XD)
    a("ds_write_b128 v3, v[16:19] offset:%d" % (L_XD + 16))
    a("v_lshlrev_b32 v22, 2, v%d" % vLane)
    a("v_add_u32 v22, s%d, v22" % sT2)
    a("ds_write_b32 v22, v20 offset:%d" % (L_XD + 2048))
    a("ds_read_b128 v[12:15], v0 offset:%d" % L_XD)
    stamp("ln")
    if WQPF:
        if WQPF == 2: a("s_waitcnt vmcnt(0)")
        for i in range(WQ0):
            wq_load(i)
    nsi = 0
    for i in range(36):
        Xc = 12 if (i >> 2) % 2 == 0 else 16
        Xn = 16 if (i >> 2) % 2 == 0 else 12
        if i + WQ0 < 36: wq_load(i + WQ0)
        elif nsi < NC:
            ns_load(nsi); nsi += 1
        if i % 4 == 0:
            a("s_waitcnt lgkmcnt(0)")
            if i + 4 < 36:
                a("ds_read_b128 v[%d:%d], v0 offset:%d" % (Xn, Xn + 3, L_XD + 4 * i + 16))
        for r in range(4):
            a("v_and_b32 v%d, v%d, v%d" % (20 + r, Xc + (i % 4), vM + r))
        a("s_waitcnt vmcnt(%d)" % (min(WQ0, 35 - i) + nsi))
        mfma(8, 20, vWQ + 4 * (i % NWR), i == 0)
    for k in range(NC2):
        ns_load(nsi); nsi += 1
    assert nsi <= 16
    a("v_lshlrev_b32 v%d, 4, v%d" % (vOff16, vLane))
    part_addr(0, 3, sWK)
    a("ds_write_b128 v0, v[8:11] offset:%d" % L_QP)
    a("v_mov_b32 v12, 0"); a("v_mov_b32 v13, 1")
    a("s_mov_b64 exec, 1")
    a("ds_add_rtn_u32 v14, v12, v13 offset:%d" % (L_CNT + 8))
    a("s_mov_b64 exec, -1")
    a("v_lshlrev_b32 v15, 3, v%d" % vLane)
    a("s_waitcnt lgkmcnt(0)")
    a("v_readfirstlane_b32 s%d, v14" % sT2)
    a("s_cmp_lg_u32 s%d, 3" % sT2)
    a("s_cbranch_scc1 L_qnl")
    for k in range(4):
        a("ds_read_b64 v[%d:%d], v15 offset:%d" % (16 + 2 * k, 17 + 2 * k, L_QP + 512 * k))
    a("v_lshlrev_b32 v15, 2, v%d" % vLane)
    a("s_waitcnt lgkmcnt(0)")
    a("v_pk_add_f32 v[16:17], v[16:17], v[18:19]")
    a("v_pk_add_f32 v[20:21], v[20:21], v[22:23]")
    a("v_pk_add_f32 v[16:17], v[16:17], v[20:21]")
    a("v_cvt_pk_bf16_f32 v16, v16, v17")
    a("ds_write_b32 v15, v16 offset:%d" % L_QF)
    a("s_mov_b64 exec, 1")
    a("ds_write_b32 v12, v13 offset:%d" % (L_CNT + 20))
    a("s_mov_b64 exec, -1")
    a.label("L_qnl")
    if wprio: a("s_setprio 0")
    stamp("qmf")
    a("s_cmp_eq_u32 s%d, 0" % sWK)
    a("s_cbranch_scc1 L_w0")
    a("s_cmp_ge_u32 s%d, 27" % sROLE)
    a("s_cbranch_scc1 L_fin")
    a("s_sub_u32 s%d, s%d, 1" % (sWK, sWK))
    a("s_mov_b32 s%d, 0x05040100" % sSEL0)
    a("s_mov_b32 s%d, 0x07060302" % sSEL1)
    a("s_cmp_ge_u32 s%d, 18" % sROLE)
    a("s_cbranch_scc1 L_dn")
    srd(rA, sX, 8 * 1152 if 'x' not in mno else 0)
    a("v_mul_u32_u24 v22, 1152, v69")
    a("v_lshl_add_u32 v22, v70, 4, v22")
    for blk in range(9):
        a("buffer_load_dwordx4 v[%d:%d], v22, s[%d:%d], 0 offen offset:%d" % (vXR + 4 * blk, vXR + 4 * blk + 3, rA, rA + 3, 128 * blk))
    a("s_mul_i32 s%d, s%d, 384" % (sT2, sWK))
    for q in range(3):
        a("buffer_load_dwordx4 v[%d:%d], v22, s[%d:%d], s%d offen offset:%d" % (vAF + 4 * q, vAF + 4 * q + 3, rA, rA + 3, sT2, 128 * q))
    a("v_mov_b32 v61, 0x3f803f80")
    a("s_waitcnt vmcnt(0)")
    for k in range(nsi, nsi + MW):
        ns_load(k)
    for k in range(36):
        a("v_dot2_f32_bf16 v60, v%d, v61, %s" % (vXR + k, "0" if k == 0 else "v60"))
    def red8(v, t):
        a("v_add_f32_dpp v%d, v%d, v%d row_ror:8 row_mask:0xf bank_mask:0xf" % (v, v, v))
        a("v_mov_b32 v%d, v%d" % (t, v))
        a("v_permlane16_swap_b32 v%d, v%d" % (v, t))
        a("v_add_f32 v%d, v%d, v%d" % (v, v, t))
        a("v_mov_b32 v%d, v%d" % (t, v))
        a("v_permlane32_swap_b32 v%d, v%d" % (v, t))
        a("v_add_f32 v%d, v%d, v%d" % (v, v, t))
    red8(60, 61)
    a("v_mul_f32 v60, 0x%x, v60" % (INV576 | 0x80000000))
    a("v_mov_b32 v61, v60")
    a("v_mov_b32 v62, 0"); a("v_mov_b32 v63, 0")
    for k in range(36):
        t = 20 + 2 * (k % 2)
        a("v_lshlrev_b32 v%d, 16, v%d" % (t, vXR + k))
        a("v_and_b32 v%d, 0xffff0000, v%d" % (t + 1, vXR + k))
        a("v_pk_add_f32 v[%d:%d], v[%d:%d], v[60:61]" % (t, t + 1, t, t + 1))
        a("v_pk_fma_f32 v[62:63], v[%d:%d], v[%d:%d], v[62:63]" % (t, t + 1, t, t + 1))
    a("v_add_f32 v62, v62, v63")
    red8(62, 63)
    a("v_mul_f32 v62, 0x%x, v62" % INV576)
    a("v_sub_f32 v60, 0, v60")
    ln_scalars(60, 62, 61, 63, 22)
    for k in range(12):
        a("v_lshlrev_b32 v24, 16, v%d" % (vAF + k))
        a("v_and_b32 v25, 0xffff0000, v%d" % (vAF + k))
        a("v_sub_f32 v24, v24, v61")
        a("v_sub_f32 v25, v25, v61")
        a("v_cvt_pk_bf16_f32 v25, v24, v25")
        a("v_lshlrev_b32 v24, 16, v25")
        a("v_and_b32 v25, 0xffff0000, v25")
        div1(26, 24, 63, 22, 27)
        div1(24, 25, 63, 22, 27)
        a("v_cvt_pk_bf16_f32 v%d, v26, v24" % (vAF + k))
    for k in range(nsi + MW, 24):
        ns_load(k, MW)
    stamp("aux_ln")
    lds_wait(L_CNT + 16, 1, "n1", 21, 22, 8)
    a("s_branch L_mm")
    a.label("L_dn")
    for k in range(nsi, 24):
        ns_load(k, MW)
    lds_wait(L_CNT + 16, 1, "n2", 21, 22, 8)
    tag16(21, 22, 0)
    a("s_mul_i32 s%d, s%d, 9" % (sT2, sXG))
    a("s_mul_i32 s%d, s%d, 3" % (sT3, sWK))
    a("s_add_u32 s%d, s%d, s%d" % (sT2, sT2, sT3))
    a("s_lshl_b32 s%d, s%d, 12" % (sT2, sT2))
    a("s_add_u32 s%d, s%d, 0x%x" % (sT2, sT2, WS_H))
    a("s_mov_b32 s%d, 0" % sCNT)
    HR = [24 + 4 * k for k in range(12)]
    for k in range(HD): a("s_sleep 127")
    if PROBE:
        a("s_add_u32 s%d, s%d, %d" % (sT3, sT2, 2 * 4096))
        a("s_mov_b64 exec, 0xff")
        a.label("L_hq")
        a("buffer_load_dwordx4 v[24:27], v%d, s[%d:%d], s%d offen sc1" % (vOff16, rWS, rWS + 3, sT3))
        a("buffer_load_dwordx4 v[28:31], v%d, s[%d:%d], s%d offen offset:2048 sc1" % (vOff16, rWS, rWS + 3, sT3))
        a("s_waitcnt vmcnt(0)")
        a("v_bitop3_b32 v8, v24, v28, v21 bitop3:0x7e")
        a("v_and_b32 v8, 0xffff, v8")
        a("v_cmp_ne_u32 vcc, 0, v8")
        a("s_cbranch_vccz L_hqo")
        a("s_add_u32 s%d, s%d, 1" % (sCNT, sCNT))
        a("s_cmp_gt_u32 s%d, 0x40000" % sCNT)
        a("s_cbranch_scc1 L_hqo")
        for k in range(hs2): a("s_sleep %d" % hsleep)
        a("s_branch L_hq")
        a.label("L_hqo")
        a("s_mov_b64 exec, -1")
    a.label("L_hp")
    a("s_mov_b32 s%d, s%d" % (sT3, sT2))
    if 'g' in mno: a("s_mov_b32 s%d, 0x7000000" % sT3)
    for k in range(12):
        a("buffer_load_dwordx4 v[%d:%d], v%d, s[%d:%d], s%d offen offset:%d sc1" % (HR[k], HR[k] + 3, vOff16, rWS, rWS + 3, sT3, 1024 * (k % 4)))
        if k % 4 == 3 and k < 11: a("s_add_u32 s%d, s%d, 4096" % (sT3, sT3))
    a("s_waitcnt vmcnt(0)")
    a("v_mov_b32 v20, 0")
    for k in range(12):
        a("v_bitop3_b32 v8, v%d, v%d, v21 bitop3:0x7e" % (HR[k], HR[k] + 1))
        a("v_bitop3_b32 v9, v%d, v%d, v21 bitop3:0x7e" % (HR[k] + 2, HR[k] + 3))
        a("v_or3_b32 v20, v20, v8, v9")
    a("v_and_b32 v20, 0xffff, v20")
    a("v_cmp_ne_u32 vcc, 0, v20")
    a("s_cbranch_vccz L_hok" if 'h' not in mno else "s_branch L_hok")
    a("s_add_u32 s%d, s%d, 1" % (sCNT, sCNT))
    a("s_cmp_gt_u32 s%d, 0x40000" % sCNT)
    a("s_cbranch_scc1 L_hok")
    a("s_sleep %d" % hsleep)
    a("s_branch L_hp")
    a.label("L_hok")
    for q in range(3):
        for hf in range(2):
            sg = HR[4 * q + hf]; up = HR[4 * q + 2 + hf]
            for e in range(4):
                a("v_and_b32 v%d, 0xffff0000, v%d" % (sg + e, sg + e))
                a("v_and_b32 v%d, 0xffff0000, v%d" % (up + e, up + e))
                a("v_mul_f32 v%d, v%d, v%d" % (sg + e, sg + e, up + e))
            a("v_cvt_pk_bf16_f32 v%d, v%d, v%d" % (vAF + 4 * q + 2 * hf, sg, sg + 1))
            a("v_cvt_pk_bf16_f32 v%d, v%d, v%d" % (vAF + 4 * q + 2 * hf + 1, sg + 2, sg + 3))
    stamp("aux_h")
    a.label("L_mm")
    def blk_mfma(q, A, first_zero):
        for j in range(8):
            B = vTB + 4 * (j % 2)
            for r in range(4):
                s0 = STB[q] + 4 * (2 * r + 1) + (j >> 1)
                s1 = STB[q] + 4 * (2 * r) + (j >> 1)
                a("v_perm_b32 v%d, v%d, v%d, s%d" % (B + r, s0, s1, sSEL1 if j & 1 else sSEL0))
            mfma(vACC + 4 * j, A, B, first_zero)
    for q in range(3):
        a("s_waitcnt vmcnt(%d)" % (16 - 8 * q))
        blk_mfma(q, vAF + 4 * q, q == 0)
    for j in range(8):
        D = vACC + 4 * j
        a("v_permlane32_swap_b32 v%d, v%d" % (D, D + 1))
        a("v_permlane32_swap_b32 v%d, v%d" % (D + 2, D + 3))
    for j in range(8):
        D = vACC + 4 * j
        a("v_add_f32_dpp v%d, v%d, v%d row_shl:8 row_mask:0xf bank_mask:0x3" % (vZ + j, D + 1, D))
        a("v_add_f32_dpp v%d, v%d, v%d row_shr:8 row_mask:0xf bank_mask:0xc" % (vZ + j, D + 2, D + 3))
    a("s_lshl_b32 s%d, s%d, 11" % (sT2, sWK))
    a("v_lshlrev_b32 v23, 5, v%d" % vLane)
    a("v_add_u32 v20, s%d, v23" % sT2)
    a("ds_write_b128 v20, v[%d:%d] offset:%d" % (vZ, vZ + 3, L_ZX))
    a("ds_write_b128 v20, v[%d:%d] offset:%d" % (vZ + 4, vZ + 7, L_ZX + 16))
    lds_sig(L_CNT, 21, 24)
    a("s_cmp_lg_u32 s%d, 0" % sWK)
    a("s_cbranch_scc1 L_fin")
    lds_wait(L_CNT, 3, "z", 21, 24, 2)
    for k in range(3):
        a("ds_read_b128 v[%d:%d], v23 offset:%d" % (vACC + 8 * k, vACC + 8 * k + 3, L_ZX + 2048 * k))
        a("ds_read_b128 v[%d:%d], v23 offset:%d" % (vACC + 8 * k + 4, vACC + 8 * k + 7, L_ZX + 2048 * k + 16))
    a("v_bfe_u32 v24, v%d, 3, 2" % vLane)
    a("v_lshlrev_b32 v24, 1, v24")
    a("v_lshrrev_b32 v25, 5, v%d" % vLane)
    a("v_add_u32 v24, v24, v25")
    a("v_and_b32 v25, 7, v%d" % vLane)
    a("s_waitcnt lgkmcnt(0)")
    for e in range(0, 8, 2):
        a("v_pk_add_f32 v[%d:%d], v[%d:%d], v[%d:%d]" % (vZ + e, vZ + e + 1, vACC + e, vACC + e + 1, vACC + 8 + e, vACC + 9 + e))
    for e in range(0, 8, 2):
        a("v_pk_add_f32 v[%d:%d], v[%d:%d], v[%d:%d]" % (vZ + e, vZ + e + 1, vZ + e, vZ + e + 1, vACC + 16 + e, vACC + 17 + e))
    a("s_cmp_ge_u32 s%d, 18" % sROLE)
    a("s_cbranch_scc1 L_dnp")
    for j in range(8):
        rbf(vZ + j, vZ + j)
    a("s_lshl_b32 s%d, s%d, 12" % (sT2, sIDX))
    a("s_add_u32 s%d, s%d, 0x%x" % (sT2, sT2, WS_H + 2048))
    a("s_cmp_ge_u32 s%d, 9" % sROLE)
    a("s_cbranch_scc1 L_upp")
    a("s_sub_u32 s%d, s%d, 2048" % (sT2, sT2))
    for j in range(8):
        silu(vZ + j, vZ + j, 26)
        rbf(vZ + j, vZ + j)
    a.label("L_upp")
    tag16(21, 22, 5)
    for j in range(8):
        a("v_or_b32 v%d, v%d, v21" % (vZ + j, vZ + j))
    a("v_lshl_add_u32 v24, v25, 3, v24")
    a("v_lshlrev_b32 v24, 4, v24")
    if 's' in mno: a("s_mov_b32 s%d, 0x7000000" % sT2)
    a("buffer_store_dwordx4 v[%d:%d], v24, s[%d:%d], s%d offen sc1" % (vZ, vZ + 3, rWS, rWS + 3, sT2))
    a("buffer_store_dwordx4 v[%d:%d], v24, s[%d:%d], s%d offen offset:1024 sc1" % (vZ + 4, vZ + 7, rWS, rWS + 3, sT2))
    stamp("aux_s1")
    a("s_branch L_fin")
    a.label("L_dnp")
    tag16(21, 22, 0)
    nibs(8, 21)
    for j in range(8):
        a("v_bfi_b32 v%d, 15, v%d, v%d" % (vZ + j, 8 + (j % 4), vZ + j))
    a("v_mul_u32_u24 v24, %d, v24" % (8 * 2304))
    a("v_lshl_add_u32 v24, v25, 4, v24")
    a("s_mul_i32 s%d, s%d, 2304" % (sT2, sXG))
    a("s_lshl_b32 s%d, s%d, 8" % (sT3, sIDX))
    a("s_add_u32 s%d, s%d, s%d" % (sT2, sT2, sT3))
    a("s_add_u32 s%d, s%d, 0x%x" % (sT2, sT2, WS_MO))
    if 's' in mno: a("s_mov_b32 s%d, 0x7000000" % sT2)
    a("buffer_store_dwordx4 v[%d:%d], v24, s[%d:%d], s%d offen sc1" % (vZ, vZ + 3, rWS, rWS + 3, sT2))
    a("buffer_store_dwordx4 v[%d:%d], v24, s[%d:%d], s%d offen offset:128 sc1" % (vZ + 4, vZ + 7, rWS, rWS + 3, sT2))
    stamp("aux_mlp")
    a("s_branch L_fin")
    a.label("L_w0")
    if WOPF: wo_prefetch()
    a("v_mov_b32 v12, 0")
    a("global_load_dword v13, v12, s[%d:%d] sc1" % (sDBG, sDBG + 1))
    a("s_memrealtime s[%d:%d]" % (sTS, sTS + 1))
    a("s_waitcnt vmcnt(0) lgkmcnt(0)")
    a("v_readfirstlane_b32 s%d, v13" % sT2)
    a("s_cmp_lg_u32 s%d, 0" % sT2)
    a("s_cbranch_scc1 L_nok")
    a("s_or_b32 s%d, s%d, 1" % (sT3, sTS))
    a("v_mov_b32 v14, s%d" % sT3)
    a("v_mov_b32 v15, 0")
    a("s_mov_b64 exec, 1")
    a("global_atomic_cmpswap v13, v12, v[14:15], s[%d:%d] sc0 sc1" % (sDBG, sDBG + 1))
    a("s_mov_b64 exec, -1")
    a("s_waitcnt vmcnt(0)")
    a("v_readfirstlane_b32 s%d, v13" % sT2)
    a("s_cmp_eq_u32 s%d, 0" % sT2)
    a("s_cselect_b32 s%d, s%d, s%d" % (sT2, sT3, sT2))
    a.label("L_nok")
    a("v_mov_b32 v15, s%d" % sT2)
    a("ds_write_b32 v12, v15 offset:%d" % (L_CNT + 16))
    for k in range(nsi, 16):
        ns_load(k, 3)
    a("s_waitcnt vmcnt(0)")
    wo_transpose()
    stamp("aux_w")
    is_consumer()
    a("s_cbranch_scc1 L_w0t")
    lds_wait(L_CNT + 12, 8, "g", 8, 9, 64)
    tag16(8, 15, 0)
    nibs(16, 8)
    a("v_lshrrev_b32 v8, 4, v%d" % vLane)
    a("v_and_b32 v9, 15, v%d" % vLane)
    a("v_mul_u32_u24 v8, 2304, v8")
    a("v_lshl_add_u32 v8, v9, 4, v8")
    a("s_mul_i32 s%d, s%d, %d" % (sT2, sB, 8 * 2304))
    a("s_add_u32 s%d, s%d, 0x%x" % (sT2, sT2, WS_MO))
    a("s_add_u32 s%d, s%d, %d" % (sT3, sT2, 4 * 2304))
    xfin_addr(10, 11)
    a("v_and_b32 v10, 7, v%d" % vLane)
    a("v_lshl_add_u32 v10, v10, 3, v11")
    a("v_bfe_u32 v11, v%d, 3, 1" % vLane)
    a("v_lshl_add_u32 v10, v11, 2, v10")
    a("v_lshlrev_b32 v10, 2, v10")
    a("s_mov_b32 s%d, 0" % sCNT)
    GB = 28
    a.label("L_gp")
    for u in range(9):
        a("buffer_load_dwordx4 v[%d:%d], v8, s[%d:%d], s%d offen offset:%d sc1" % (GB + 8 * u, GB + 8 * u + 3, rWS, rWS + 3, sT2, 256 * u))
        a("buffer_load_dwordx4 v[%d:%d], v8, s[%d:%d], s%d offen offset:%d sc1" % (GB + 8 * u + 4, GB + 8 * u + 7, rWS, rWS + 3, sT3, 256 * u))
    a("s_waitcnt vmcnt(0)")
    a("v_mov_b32 v24, 0")
    for u in range(9):
        for k in range(0, 4, 2):
            a("v_bitop3_b32 v25, v%d, v%d, v%d bitop3:0x7e" % (GB + 8 * u + k, GB + 8 * u + 4 + k, 16 + k))
            a("v_bitop3_b32 v26, v%d, v%d, v%d bitop3:0x7e" % (GB + 8 * u + k + 1, GB + 8 * u + 5 + k, 17 + k))
            a("v_or3_b32 v24, v24, v25, v26")
    a("v_and_b32 v24, 15, v24")
    a("v_cmp_ne_u32 vcc, 0, v24")
    a("s_cbranch_vccz L_gok" if not (nomlp or mno) else "s_branch L_gok")
    a("s_add_u32 s%d, s%d, 1" % (sCNT, sCNT))
    a("s_cmp_gt_u32 s%d, 0x40000" % sCNT)
    a("s_cbranch_scc1 L_fin")
    a("s_sleep 64")
    a("s_branch L_gp")
    a.label("L_gok")
    for u in range(9):
        g = GB + 8 * u
        for k in range(8):
            a("v_and_b32 v%d, -16, v%d" % (g + k, g + k))
        a("v_pk_add_f32 v[%d:%d], v[%d:%d], v[%d:%d]" % (g, g + 1, g, g + 1, g + 4, g + 5))
        a("v_pk_add_f32 v[%d:%d], v[%d:%d], v[%d:%d]" % (g + 2, g + 3, g + 2, g + 3, g + 6, g + 7))
        xreduce(g)
        rbf(g, g)
        silu(g + 1, g, g + 2)
        rbf(g + 1, g + 1)
        a("ds_write_b32 v10, v%d offset:%d" % (g + 1, L_G + 256 * u))
    stamp("aux_red")
    a.label("L_w0t")
    tail_prep("tw")
    a("s_setprio 3")
    a("s_branch L_tail")
    a.label("L_end")
    a("s_endpgm")
    body = a.finalize()
    out = HEADER
    out += "; @launch grid=(256,1,1) block=(768,1,1) lds=%d\n" % L_END
    out += DOC
    out += '.amdgcn_target "amdgcn-amd-amdhsa--gfx950"\n.text\n.globl %s\n.p2align 8\n.type %s,@function\n' % (K, K)
    out += body
    out += '.section .rodata,"a"\n.p2align 6\n.amdhsa_kernel %s\n' % K
    out += "  .amdhsa_next_free_vgpr 168\n  .amdhsa_next_free_sgpr %d\n  .amdhsa_accum_offset 168\n" % (100 if (ts or RC or CC) else 72)
    out += "  .amdhsa_group_segment_fixed_size 0\n  .amdhsa_kernarg_size 96\n  .amdhsa_user_sgpr_count 2\n"
    out += "  .amdhsa_user_sgpr_kernarg_segment_ptr 1\n  .amdhsa_system_sgpr_workgroup_id_x 1\n.end_amdhsa_kernel\n"
    if ts: out += "; STAMPS " + ",".join(stampnames) + "\n"
    return out

if __name__ == "__main__":
    if len(sys.argv) > 1 and sys.argv[1].startswith("["):
        names = []
        for c in eval(sys.argv[1]):
            n = "k15_" + "_".join("%s%s" % (k, str(v).replace(" ", "").replace("(", "").replace(")", "").replace(",", "-")) for k, v in c.items()) + ".s"
            open(n, "w").write(gen(**c)); names.append(n)
        print(" ".join(names))
    else:
        kw = eval("dict(%s)" % (sys.argv[2] if len(sys.argv) > 2 else ""))
        open(sys.argv[1] if len(sys.argv) > 1 else "k.s", "w").write(gen(**kw))
```

```python
import sys
from asmlib import Asm
NAME = "recurrent_scan__mha_block_cached__glu_gated_swiglu__decode"
HEADER = open("cdna_kernels/%s.s.ref" % NAME).read().split("; Override launch")[0]

LOG2E = 0x3fb8aa3b
SCALE = 0x3db504f3
INV576 = 0x3ae38e39
EPS = 0x3727c5ac

L_QP = 0
L_OP = 2048
L_ST = 6144
L_CNT = 6208
L_G = 6272
L_OD = 8576
L_XD = 13184
L_ZX = 22400
L_P = L_ZX + 3 * 2048
PG = 528
L_QF = L_P + 8 * 4 * PG
L_END = L_QF + 256

WS_H = 1 << 20
WS_MO = (1 << 20) + (512 << 10)
WS_RT = 2 << 20
WS_TS = 4 << 20


DOC = """; ---------------------------------------------------------------------------------------------
; ---------------------------------------------------------------------------------------------
"""

def gen(LA=8, PLA=4, VT=10, pol="nt", wqpol="", wopol="", mpol="", ts=False, poll_sleep=1, nomlp=False,
        PR=37, early=(1, 2, 3, 8, 14, 20, 26, 32, 35, 36), prio=3, TW=(6, 6), TS=2, KW=(3, 3), VW=(3, 3), EW=6, EN=0, MW=3,
        ad=None, CW=None, nowo=False, nowq=False, mno='', hsleep=127, JROT=0, HD=0, V3=(2, 3, 6, 4200, 430, 200), VB=None, KB=None, PW2=None, PN=99, WQ0=8, RC=None, RT=None, WS0=44, WS1=124, KX=1, PH=None, wprio=0, NC=8, CC=(2, 3, 4, -40, 40, 33, 480, 435, 150, 3), NSET=1, stpol='sc1', PS=4, tprio=None, P0=0, PROBE=True, SEL=True, hs2=1, SMI=True, SW=4, NC2=0, WOPF=1, WQPF=2, CH=None, ENDB=0, ENDI=7, STG=0, ROT=None, XS=None, PF=0, pfpol='', PFW=1):
    R = 16
    a = Asm()
    sX, sK, sV, sWQ, sWO, sW1, sW3, sW2, sOUT, sDBG, sWS = 4, 6, 8, 10, 12, 16, 18, 20, 22, 24, 26
    sWAVE = 3
    sB, sH, sBH = 28, 29, 30
    sT0, sT1, sT2, sT3 = 31, 32, 33, 34
    sCNT = 35
    rKV, rA, rB, rWS = 36, 40, 44, 48
    sVlo, sVhi = 52, 53
    sOFF = 54
    sWOFF = 55
    sM1, sM2 = 56, 58
    sSEL0, sSEL1 = 60, 61
    sTS = 62
    sTSB = 64
    sSLOT = 65
    sU, sUN, sWK = 66, 67, 68
    sXG, sJ = 69, 70
    sDL = 71
    sMS, sREF, sISR, sEO, sST0 = 14, 96, 15, 71, 17
    if RC or CC: V3 = None
    sRB, sMODE = 18, 19
    vLane, vOff16, vXf = 1, 2, 3
    vM = 4; vQ = 8; vS = 12; vAcc = 20; vA0 = 24; vA1 = 28; vP0 = 12; vP1 = 16
    vT = 24
    vPA, vPR, vPW, vWOA = 36, 37, 38, 39
    vRing = 40
    vW = 104
    stampnames = {}
    def stamp(tag):
        if not ts: return
        if tag not in stampnames: stampnames[tag] = len(stampnames)
        k = stampnames[tag]
        assert k < 24
        a("s_memrealtime s[%d:%d]" % (sTS, sTS + 1))
        a("s_waitcnt lgkmcnt(0)")
        a("s_mov_b32 s%d, s%d" % (72 + k, sTS))
    def stamp_flush():
        if not ts: return
        a("v_mov_b32 v23, s%d" % sTSB)
        a("s_mov_b64 exec, 1")
        for k in range(24):
            a("v_mov_b32 v22, s%d" % (72 + k))
            a("buffer_store_dword v22, v23, s[%d:%d], 0 offen offset:%d" % (rWS, rWS + 3, 4 * k))
        a("s_mov_b64 exec, -1")
    def srd_tail(r, nrec):
        if isinstance(nrec, int): a("s_mov_b32 s%d, 0x%x" % (r + 2, nrec))
        else: a(nrec % (r + 2))
        a("s_mov_b32 s%d, 0x20000" % (r + 3))
    def srd(r, base, nrec):
        a("s_mov_b32 s%d, s%d" % (r, base)); a("s_mov_b32 s%d, s%d" % (r + 1, base + 1))
        srd_tail(r, nrec)
    def srd_off(r, base, soff, nrec):
        a("s_add_u32 s%d, s%d, s%d" % (r, base, soff))
        a("s_addc_u32 s%d, s%d, 0" % (r + 1, base + 1))
        srd_tail(r, nrec)
    def wave_reduce(op, v, sdst):
        for r in (8, 4, 2, 1):
            a("%s_dpp v%d, v%d, v%d row_ror:%d row_mask:0xf bank_mask:0xf" % (op, v, v, v, r))
        a("%s_dpp v%d, v%d, v%d row_bcast:15 row_mask:0xa bank_mask:0xf" % (op, v, v, v))
        a("%s_dpp v%d, v%d, v%d row_bcast:31 row_mask:0xc bank_mask:0xf" % (op, v, v, v))
        a("v_readlane_b32 s%d, v%d, 63" % (sdst, v))
    def rbf(d, s):
        a("v_cvt_pk_bf16_f32 v%d, v%d, v%d" % (d, s, s))
        a("v_and_b32 v%d, 0xffff0000, v%d" % (d, d))
    def ln_scalars(vmean, vvar, vmb, vsd, vrs):
        rbf(vmb, vmean)
        rbf(vsd, vvar)
        a("v_add_f32 v%d, 0x%x, v%d" % (vsd, EPS, vsd))
        rbf(vsd, vsd)
        a("v_sqrt_f32 v%d, v%d" % (vsd, vsd))
        rbf(vsd, vsd)
        a("v_rcp_f32 v%d, v%d" % (vrs, vsd))
    def div1(d, n, vsd, vrs, t):
        a("v_mul_f32 v%d, v%d, v%d" % (d, n, vrs))
        a("v_fma_f32 v%d, -v%d, v%d, v%d" % (t, d, vsd, n))
        a("v_fma_f32 v%d, v%d, v%d, v%d" % (d, t, vrs, d))
    def silu(d, x, t):
        a("v_mul_f32 v%d, 0x%x, v%d" % (t, LOG2E | 0x80000000, x))
        a("v_exp_f32 v%d, v%d" % (t, t))
        a("v_add_f32 v%d, 1.0, v%d" % (t, t))
        a("v_rcp_f32 v%d, v%d" % (t, t))
        a("v_mul_f32 v%d, v%d, v%d" % (d, x, t))
    def mfma(D, A, B, zero):
        a("v_mfma_f32_16x16x32_bf16 v[%d:%d], v[%d:%d], v[%d:%d], %s" % (D, D + 3, A, A + 3, B, B + 3, "0" if zero else "v[%d:%d]" % (D, D + 3)))
    def make_masks(t0, t1):
        a("v_and_b32 v%d, 1, v%d" % (t0, vLane))
        a("v_lshlrev_b32 v%d, 4, v%d" % (t0, t0))
        a("v_mov_b32 v%d, 0xffff" % t1)
        a("v_lshlrev_b32 v%d, v%d, v%d" % (t0, t0, t1))
        a("v_bfe_u32 v%d, v%d, 1, 2" % (t1, vLane))
        for r in range(4):
            a("v_cmp_eq_u32 vcc, %d, v%d" % (r, t1))
            a("v_cndmask_b32 v%d, 0, v%d, vcc" % (vM + r, t0))
    def xfin_addr(d, t):
        a("v_lshrrev_b32 v%d, 4, v%d" % (t, vLane))
        a("v_bfrev_b32 v%d, v%d" % (t, t))
        a("v_lshrrev_b32 v%d, 30, v%d" % (t, t))
        a("v_and_b32 v%d, 15, v%d" % (d, vLane))
        a("v_lshl_add_u32 v%d, v%d, 2, v%d" % (d, d, t))
    def part_addr(d, t, sw):
        a("v_and_b32 v%d, 15, v%d" % (d, vLane))
        a("v_bfe_u32 v%d, v%d, 4, 1" % (t, vLane))
        a("v_lshlrev_b32 v%d, 5, v%d" % (d, d))
        a("v_lshl_add_u32 v%d, v%d, 4, v%d" % (d, t, d))
        a("s_lshl_b32 s%d, s%d, 9" % (sT2, sw))
        a("v_add_u32 v%d, s%d, v%d" % (d, sT2, d))
    def wo_setup(t):
        a("s_mul_i32 s%d, s%d, 0x%x" % (sT2, sH, 128 * 1152))
        a("s_lshl_b32 s%d, s%d, 7" % (sT3, sUN))
        a("s_add_u32 s%d, s%d, s%d" % (sT2, sT2, sT3))
        srd_off(rB, sWO, sT2, "s_sub_u32 s%%d, 0x%x, s%d" % (4096 * 1152, sT2))
        a("v_lshrrev_b32 v%d, 3, v%d" % (vWOA, vLane))
        a("v_and_b32 v%d, 7, v%d" % (t, vLane))
        a("v_mul_u32_u24 v%d, 0x%x, v%d" % (vWOA, 8 * 1152, vWOA))
        a("v_lshl_add_u32 v%d, v%d, 4, v%d" % (vWOA, t, vWOA))
        a("s_mov_b32 s%d, 0" % sWOFF)
    def wo_load(i):
        if nowo: a("s_mov_b32 s%d, 0x7fffffff" % sWOFF)
        a("buffer_load_dwordx4 v[%d:%d], v%d, s[%d:%d], s%d offen offset:%d %s" % (vW + 4 * i, vW + 4 * i + 3, vWOA, rB, rB + 3, sWOFF, (i % 2) * 1152, wopol))
        if i % 2 == 1 and i < 15: a("s_add_u32 s%d, s%d, %d" % (sWOFF, sWOFF, 2304 if i != 7 else 58 * 1152))
    def xf_load(t0, t1):
        xfin_addr(t0, t1)
        a("s_lshl_b32 s%d, s%d, 7" % (sT3, sUN))
        a("v_lshlrev_b32 v%d, 1, v%d" % (t0, t0))
        a("buffer_load_ushort v%d, v%d, s[%d:%d], s%d offen nt" % (vXf, t0, rA, rA + 3, sT3))
    def lds_wait(off, n, tag, va, vb, sleep=1):
        a("v_mov_b32 v%d, 0" % va)
        a.label("L_lw" + tag)
        a("ds_read_b32 v%d, v%d offset:%d" % (vb, va, off))
        a("s_waitcnt lgkmcnt(0)")
        a("v_readfirstlane_b32 s%d, v%d" % (sT2, vb))
        a("s_cmp_ge_u32 s%d, %d" % (sT2, n))
        a("s_cbranch_scc1 L_lg" + tag)
        a("s_sleep %d" % sleep)
        a("s_branch L_lw" + tag)
        a.label("L_lg" + tag)
    def lds_sig(off, va, vb):
        a("v_mov_b32 v%d, 0" % va); a("v_mov_b32 v%d, 1" % vb)
        a("s_mov_b64 exec, 1")
        a("ds_add_u32 v%d, v%d offset:%d" % (va, vb, off))
        a("s_mov_b64 exec, -1")
    def tag16(d, vn, bit):
        a("v_bfe_u32 v%d, v%d, %d, 1" % (d, vLane, bit))
        a("v_lshlrev_b32 v%d, 4, v%d" % (d, d))
        a("v_bfe_u32 v%d, v%d, v%d, 16" % (d, vn, d))
    def nibs(d, t16):
        for k in range(3, -1, -1):
            a("v_bfe_u32 v%d, v%d, %d, 4" % (d + k, t16, 4 * k))
    sPUB = 16
    def wo_transpose(hook=None):
        a("s_mov_b32 s%d, 0x05040100" % sSEL0)
        a("s_mov_b32 s%d, 0x07060302" % sSEL1)
        TQ = [88, 92, 96, 100, 8, 20, 24, 32]
        for t, dst in ((0, TQ), (1, [vW + 4 * j for j in range(8)])):
            if hook: hook()
            for j in range(8):
                for r in range(4):
                    s0 = vW + 32 * t + 4 * (2 * r + 1) + (j >> 1)
                    s1 = vW + 32 * t + 4 * (2 * r) + (j >> 1)
                    a("v_perm_b32 v%d, v%d, v%d, s%d" % (dst[j] + r, s0, s1, sSEL1 if j & 1 else sSEL0))
        for j in range(8):
            for r in range(4):
                a("v_mov_b32 v%d, v%d" % (vW + 32 + 4 * j + r, TQ[j] + r))
    def tail_prep(tag):
        lds_wait(L_CNT + 16, 1, tag, 38, 39, 4)
        tag16(0, 39, 4)
        a("v_lshlrev_b32 v38, 3, v%d" % vLane)
        a("v_and_b32 v3, 7, v%d" % vLane)
        a("v_lshrrev_b32 v39, 4, v%d" % vLane)
        a("v_lshlrev_b32 v3, 5, v3")
        a("v_lshl_add_u32 v3, v39, 4, v3")
        a("v_lshrrev_b32 v39, 3, v%d" % vLane)
        a("v_lshlrev_b32 v39, 4, v39")
        a("s_mul_i32 s%d, s%d, 2304" % (sPUB, sSLOT))
        a("s_lshl_b32 s%d, s%d, 8" % (sU, sUN))
        a("s_add_u32 s%d, s%d, s%d" % (sPUB, sPUB, sU))
        a("s_mov_b32 s%d, 0xffff0000" % sM1); a("s_mov_b32 s%d, 0xffff0000" % (sM1 + 1))
    def is_consumer():
        a("s_lshl2_add_u32 s%d, s%d, 3" % (sT2, sB))
        a("s_cmp_lg_u32 s%d, s%d" % (sH, sT2))
    def wo_prefetch():
        a("s_mul_i32 s%d, s%d, 0x%x" % (sT2, sH, 128 * 1152))
        a("s_mul_i32 s%d, s%d, 18432" % (sT3, sB))
        a("s_add_u32 s%d, s%d, s%d" % (sT2, sT2, sT3))
        srd_off(rB, sWO, sT2, 18432)
        a("v_lshlrev_b32 v71, 7, v%d" % vLane)
        for k in range(3):
            a("s_mov_b32 s%d, %d" % (sT3, 8192 * k))
            a("buffer_load_dword v70, v71, s[%d:%d], s%d offen %s" % (rB, rB + 3, sT3, pfpol))
    def common_setup():
        srd(rWS, sWS, 8 << 20)
        if ts:
            a("s_mul_i32 s%d, s2, 12" % sTSB); a("s_add_u32 s%d, s%d, s%d" % (sTSB, sTSB, sWAVE))
            a("s_lshl_b32 s%d, s%d, 7" % (sTSB, sTSB)); a("s_add_u32 s%d, s%d, 0x%x" % (sTSB, sTSB, WS_TS))

    K = NAME + "_kernel"
    a.label(K)
    a("s_cmp_ge_u32 s2, 256")
    a("s_cbranch_scc1 L_end")
    if ts:
        for k in range(24): a("s_mov_b32 s%d, 0" % (72 + k))
    stamp("start")
    a("s_load_dwordx16 s[4:19], s[0:1], 0")
    a("s_load_dwordx8 s[20:27], s[0:1], 64")
    if ad or V3 or RC or CC: a("s_memrealtime s[%d:%d]" % (sTS, sTS + 1))
    a("v_lshrrev_b32 v2, 6, v0")
    a("v_and_b32 v%d, 63, v0" % vLane)
    a("v_readfirstlane_b32 s%d, v2" % sWAVE)
    a("v_lshlrev_b32 v%d, 4, v%d" % (vOff16, vLane))
    a("s_and_b32 s%d, s2, 7" % sXG)
    a("s_lshr_b32 s%d, s2, 3" % sJ)
    a("s_and_b32 s%d, s%d, 3" % (sH, sJ))
    a("s_lshl2_add_u32 s%d, s%d, s%d" % (sH, sXG, sH))
    a("s_lshr_b32 s%d, s%d, 2" % (sB, sJ))
    a("s_lshl_b32 s%d, s%d, 5" % (sSLOT, sB))
    a("s_add_u32 s%d, s%d, s%d" % (sSLOT, sSLOT, sH))
    a("s_lshl_b32 s%d, s%d, 20" % (sBH, sSLOT))
    a("s_lshl_b32 s%d, s%d, 12" % (sOFF, sWAVE))
    if ROT is not None:
        a("s_lshr_b32 s%d, s%d, %d" % (sT0, sSLOT, ROT))
        a("s_add_u32 s%d, s%d, s%d" % (sT0, sT0, sWAVE))
        a("s_and_b32 s%d, s%d, 7" % (sT0, sT0))
        a("s_lshl_b32 s%d, s%d, 12" % (sOFF, sT0))
    if XS is not None:
        a("s_lshr_b32 s%d, s%d, %d" % (sT0, sSLOT, XS[0]))
        a("s_and_b32 s%d, s%d, %d" % (sT0, sT0, XS[1]))
        a("s_lshl_b32 s%d, s%d, %d" % (sT0, sT0, XS[2]))
        a("s_add_u32 s%d, s%d, s%d" % (sOFF, sOFF, sT0))
    if STG:
        a("s_mul_i32 s%d, s%d, %d" % (sT0, sSLOT, STG))
        a("s_add_u32 s%d, s%d, s%d" % (sOFF, sOFF, sT0))
        a("s_and_b32 s%d, s%d, 0xfffff" % (sOFF, sOFF))
    a("s_mul_i32 s%d, s%d, 1152" % (sT0, sB))
    a("s_lshl_b32 s%d, s%d, 8" % (sT1, sH))
    a("s_min_u32 s%d, s%d, 8" % (sUN, sWAVE))
    a("s_cmp_ge_u32 s%d, 8" % sWAVE)
    a("s_cbranch_scc1 L_w")
    a("s_waitcnt lgkmcnt(0)")
    srd_off(rKV, sK, sBH, 1 << 20)
    if prio: a("s_setprio %d" % prio)
    cur = {"pol": pol}
    def issue(n, switch, reg=None):
        j = n % 4; r = vRing + 4 * (n % R) if reg is None else reg
        a("buffer_load_dwordx4 v[%d:%d], v%d, s[%d:%d], s%d offen offset:%d %s" % (r, r + 3, vOff16, rKV, rKV + 3, sOFF, j * 1024, cur['pol']))
        if j == 3:
            a("s_add_u32 s%d, s%d, 0x8000" % (sOFF, sOFF))
            if STG:
                a("s_and_b32 s%d, s%d, 0xfffff" % (sOFF, sOFF))
                if switch and n == 127:
                    a("s_mov_b32 s%d, s%d" % (rKV, sVlo))
                    a("s_mov_b32 s%d, s%d" % (rKV + 1, sVhi))
            elif switch:
                a("s_cmp_ge_u32 s%d, 0x100000" % sOFF)
                a("s_cselect_b32 s%d, s%d, s%d" % (rKV, sVlo, rKV))
                a("s_cselect_b32 s%d, s%d, s%d" % (rKV + 1, sVhi, rKV + 1))
                a("s_and_b32 s%d, s%d, 0xfffff" % (sOFF, sOFF))
    lab = [0]
    def wait2(small, big):
        if small == big:
            a("s_waitcnt vmcnt(%d)" % small); return
        lab[0] += 1
        a("s_cbranch_vccnz L_wd%d" % lab[0])
        a("s_waitcnt vmcnt(%d)" % small)
        a.label("L_wd%d" % lab[0])
        a("s_waitcnt vmcnt(%d)" % big)
    extra = [12, 20, 4, 36]
    def preg(m):
        if PR == 32: return vRing + 4 * m
        if m == 0: return 16
        if m <= 16: return vRing + 4 * ((PR + m - 1) % 16)
        if m <= 32: return vW + 4 * (m - 17)
        return extra[m - 33]
    assert PR == 32 or 33 <= PR <= 37
    for n in range(PLA):
        issue(n, False, preg(n))
    a("s_barrier")
    stamp("issued")
    common_setup()
    if V3: a("s_add_u32 s%d, s%d, %d" % (sDL, sTS, V3[3]))
    if CC:
        a("s_mov_b32 s%d, s%d" % (sST0, sTS))
        a("s_cmp_eq_u32 s2, %d" % CC[5])
        a("s_cselect_b32 s%d, 1, 0" % sISR)
        a("s_mov_b32 s%d, 0" % sRB)
    if RC:
        a("s_mov_b32 s%d, s%d" % (sST0, sTS))
        a("s_mov_b32 s%d, 0" % sISR)
        for r_, wg in enumerate(RC[5]):
            a("s_cmp_eq_u32 s2, %d" % wg)
            a("s_cselect_b32 s%d, %d, s%d" % (sISR, r_ + 1, sISR))
    srd_off(rA, sX, sT0, 1160)
    a("s_add_u32 s%d, s%d, s%d" % (sVlo, sV, sBH)); a("s_addc_u32 s%d, s%d, 0" % (sVhi, sV + 1))
    a("s_mov_b32 s%d, 0xaaaaaaaa" % sM1); a("s_mov_b32 s%d, 0xaaaaaaaa" % (sM1 + 1))
    a("s_mov_b32 s%d, 0xcccccccc" % sM2); a("s_mov_b32 s%d, 0xcccccccc" % (sM2 + 1))
    a("v_and_b32 v0, 15, v%d" % vLane)
    a("v_lshlrev_b32 v0, 4, v0")
    if PH:
        a("s_cmp_lt_u32 s%d, %d" % (sWAVE, PH))
        a("s_cselect_b64 vcc, -1, 0")
    for n in range(PLA, PR):
        w = PLA if (PW2 is None or n < PN) else PW2
        if PH: wait2(w - 2, w - 1)
        else: a("s_waitcnt vmcnt(%d)" % (w - 1))
        issue(n, False, preg(n))
    stamp("preB1")
    if PF:
        a("v_lshlrev_b32 v35, 7, v%d" % vLane)
        a("v_mov_b32 v24, 0")
        a("s_mov_b32 s%d, s%d" % (sT0, sOFF))
        for k in range(PF):
            a("ds_read_b32 v25, v24 offset:%d" % (L_CNT + 20))
            a("s_waitcnt vmcnt(%d) lgkmcnt(0)" % (PFW - 1))
            a("v_readfirstlane_b32 s%d, v25" % sT2)
            a("s_cmp_ge_u32 s%d, 1" % sT2)
            a("s_cbranch_scc1 L_lgq")
            a("s_mov_b32 exec_hi, 0")
            a("buffer_load_dword v34, v35, s[%d:%d], s%d offen %s" % (rKV, rKV + 3, sT0, pfpol))
            a("s_mov_b32 exec_hi, -1")
            a("s_add_u32 s%d, s%d, 0x8000" % (sT0, sT0))
    lds_wait(L_CNT + 20, 1, "q", 24, 25)
    a("ds_read_b128 v[%d:%d], v0 offset:%d" % (vQ, vQ + 3, L_QF))
    a("s_waitcnt lgkmcnt(0)")
    stamp("q")
    vPa, vPb, vR0, vR1, vT0_, vT1_, vU0, vU1, vK, vSd = range(24, 34)
    def kcompute(n, r, sdst=None):
        P = vPa if n % 2 == 0 else vPb
        for d in range(4):
            a("v_dot2_f32_bf16 v%d, v%d, v%d, %s" % (P, r + d, vQ + d, "0" if d == 0 else "v%d" % P))
        if n % 2 == 1:
            Rr = vR0 if (n >> 1) % 2 == 0 else vR1
            a("v_add_f32_dpp v%d, v%d, v%d row_ror:8 row_mask:0xf bank_mask:0x3" % (Rr, vPa, vPa))
            a("v_add_f32_dpp v%d, v%d, v%d row_ror:8 row_mask:0xf bank_mask:0xc" % (Rr, vPb, vPb))
        if n % 4 == 3:
            Tt = vT0_ if (n >> 2) % 2 == 0 else vT1_
            a("v_add_f32_dpp v%d, v%d, v%d row_shl:4 row_mask:0xf bank_mask:0x5" % (Tt, vR0, vR0))
            a("v_add_f32_dpp v%d, v%d, v%d row_shr:4 row_mask:0xf bank_mask:0xa" % (Tt, vR1, vR1))
        if n % 8 == 7:
            U = vU0 if (n >> 3) == 0 else vU1
            a("v_cndmask_b32 v%d, v%d, v%d, s[%d:%d]" % (vK, vT0_, vT1_, sM2, sM2 + 1))
            a("v_cndmask_b32 v%d, v%d, v%d, s[%d:%d]" % (vSd, vT1_, vT0_, sM2, sM2 + 1))
            a("v_add_f32_dpp v%d, v%d, v%d quad_perm:[2,3,0,1] row_mask:0xf bank_mask:0xf" % (U, vSd, vK))
        if n == 15:
            a("v_cndmask_b32 v%d, v%d, v%d, s[%d:%d]" % (vK, vU0, vU1, sM1, sM1 + 1))
            a("v_cndmask_b32 v%d, v%d, v%d, s[%d:%d]" % (vSd, vU1, vU0, sM1, sM1 + 1))
            if sdst is None:
                for t in range(7):
                    a("v_mov_b32 v%d, v%d" % (vS + t, vS + t + 1))
            a("v_add_f32_dpp v%d, v%d, v%d quad_perm:[1,0,3,2] row_mask:0xf bank_mask:0xf" % (vK, vSd, vK))
            rbf(vK, vK)
            a("v_mul_f32 v%d, 0x%x, v%d" % (vK, SCALE, vK))
            rbf(vS + 7 if sdst is None else sdst, vK)
    def sreg(g): return (16, 17, 18, 19, 12, 13, 14, 15)[g]
    early = list(early)[:LA]
    assert len(early) == LA
    issued_new = 0
    PMAX = max(PLA, PW2 or 0)
    consumed = set()
    for m in range(PR):
        cnt = PR - 1 - m + issued_new
        if cnt < PMAX + LA:
            a("s_waitcnt vmcnt(%d)" % cnt)
        kcompute(m % 16, preg(m), sreg(m // 16))
        consumed.add(preg(m))
        if m in early:
            assert vRing + 4 * ((PR + issued_new) % 16) in consumed
            issue(PR + issued_new, True); issued_new += 1
    assert issued_new == LA
    stamp("backlog")
    make_masks(34, 35)
    part_addr(vPA, 34, sWAVE)
    wo_setup(34)
    a("v_lshrrev_b32 v34, 4, v%d" % vLane)
    a("v_mul_u32_u24 v%d, %d, v34" % (vPR, PG))
    a("s_mul_i32 s%d, s%d, %d" % (sT2, sWAVE, 4 * PG))
    a("v_add_u32 v%d, s%d, v%d" % (vPR, sT2, vPR))
    a("v_bfrev_b32 v34, v%d" % vLane)
    a("v_lshrrev_b32 v34, 26, v34")
    a("v_and_b32 v34, 60, v34")
    a("v_add_u32 v%d, v%d, v34" % (vPW, vPR))
    def set_class():
        a("s_cmp_lt_u32 s2, 72")
        a("s_cselect_b64 vcc, -1, 0")
    def adapt():
        a("s_waitcnt lgkmcnt(0)")
        a("s_sub_u32 s%d, s%d, s%d" % (sT2, sTS, sDL))
        a("s_cmp_gt_i32 s%d, 0" % sT2)
        a("s_cselect_b64 vcc, -1, 0")
        a("s_add_u32 s%d, s%d, %d" % (sDL, sDL, ad[1]))
    def publish(tag):
        a("s_cmp_eq_u32 s%d, 0" % sISR)
        a("s_cbranch_scc1 L_np%s" % tag)
        a("s_cmp_lg_u32 s%d, 0" % sWAVE)
        a("s_cbranch_scc1 L_np%s" % tag)
        a("s_lshl2_add_u32 s%d, s%d, s%d" % (sT2, sISR, sEO))
        a("s_sub_u32 s%d, s%d, 4" % (sT2, sT2))
        a("s_mov_b32 s%d, s%d" % (sT3, sMS))
        a("s_atomic_swap s%d, s[%d:%d], s%d" % (sT3, sWS, sWS + 1, sT2))
        a.label("L_np%s" % tag)
    def refload():
        a("s_load_dwordx4 s[%d:%d], s[%d:%d], s%d" % (sREF, sREF + 3, sWS, sWS + 1, sEO))
    if RC or CC: a("s_mov_b32 s%d, 0x%x" % (sEO, WS_RT))
    def wait3(f, par=0):
        c = [f(CC[0]), f(CC[1]), f(CC[2])]
        if CH: c = [f((lv + (par & 1)) >> 1) for lv in CH]
        lab[0] += 1
        if c[1] != c[2]: a("s_cbranch_vccnz L_wb%d" % lab[0])
        if c[0] != c[1]:
            a("s_cmp_lg_u32 s%d, 0" % sMODE)
            a("s_cbranch_scc1 L_wm%d" % lab[0])
            a("s_waitcnt vmcnt(%d)" % c[0])
            a.label("L_wm%d" % lab[0])
        a("s_waitcnt vmcnt(%d)" % c[1])
        if c[1] != c[2]:
            a.label("L_wb%d" % lab[0])
            a("s_waitcnt vmcnt(%d)" % c[2])
    def cload():
        a("s_sub_u32 s%d, s%d, 256" % (sT2, sEO))
        a("s_load_dword s%d, s[%d:%d], s%d" % (sREF, sWS, sWS + 1, sT2))
    def ctl(step, fresh, tag):
        lab[0] += 1
        a("s_cmp_lg_u32 s%d, 0" % sRB)
        a("s_cselect_b32 s%d, %s, 0" % (sT2, step))
        a("s_add_u32 s%d, s%d, s%d" % (sRB, sRB, sT2))
        if fresh is not None:
            a("s_sub_u32 s%d, s%d, s%d" % (sT3, sREF, sST0))
            a("s_add_u32 s%d, s%d, %s" % (sT2, sREF, fresh))
            a("s_cmp_lt_u32 s%d, 0x8000" % sT3)
            a("s_cselect_b32 s%d, s%d, s%d" % (sRB, sT2, sRB))
        a("s_sub_u32 s%d, s%d, s%d" % (sT2, sTS, sRB))
        a("s_cmp_eq_u32 s%d, 0" % sRB)
        a("s_cselect_b32 s%d, 0, s%d" % (sT2, sT2))
        a("s_cmp_lg_u32 s%d, 0" % sISR)
        a("s_cselect_b32 s%d, 0, s%d" % (sT2, sT2))
        if ENDB and tag == "v":
            a("s_cmp_ge_u32 s%d, %d" % (sCNT, ENDI))
            a("s_cselect_b32 s%d, %d, 0" % (sT3, ENDB))
            a("s_add_u32 s%d, s%d, s%d" % (sT2, sT2, sT3))
        a("s_cmp_gt_i32 s%d, %d" % (sT2, CC[4]))
        a("s_cselect_b64 vcc, -1, 0")
        a("s_cmp_gt_i32 s%d, %d" % (sT2, CC[3]))
        a("s_cselect_b32 s%d, 1, 0" % sMODE)
    if CC:
        a("s_mov_b64 vcc, 0")
        a("s_mov_b32 s%d, 1" % sMODE)
    ops = ["K%d" % i for i in range(PR, PR + LA)]
    wosteps = [WS0 + ((WS1 - WS0) * k) // 16 for k in range(16)]
    wi = 0
    for m in range(PR, 128):
        if m == 64: stamp("trk")
        if RC and m == 111: a("s_memrealtime s[%d:%d]" % (sTS, sTS + 1))
        if RC and m == 112:
            a("s_waitcnt lgkmcnt(0)")
            a("s_mov_b32 s%d, s%d" % (sMS, sTS))
            publish("k")
        if RC and m == 121: refload()
        if CC:
            G0 = CC[9]; TK = CC[6]
            if m >= 16 * G0 - 1:
                if m % 8 == 7: a("s_memrealtime s[%d:%d]" % (sTS, sTS + 1))
                if m % 8 == 0:
                    a("s_waitcnt lgkmcnt(0)")
                    if m % 16 == 0:
                        if m > 16 * G0: ctl(str(TK // 2), None, "")
                        a("s_mov_b32 s%d, s%d" % (sMS, sTS))
                        publish("k%d" % m)
                        if m > 16 * G0: cload()
                        a("s_add_u32 s%d, s%d, 256" % (sEO, sEO))
                    elif m > 16 * G0 + 8:
                        ctl(str(TK // 2), str(TK + TK // 2), "")
        req = len(ops) - 1 - ops.index("K%d" % m)
        def allowed(w):
            k = 0; n_ = 0
            for o in reversed(ops):
                if o != "W":
                    if k == w - 1: break
                    k += 1
                elif not KX:
                    if k == w - 1: break
                    k += 1; n_ -= 0
                n_ += 1
            return min(req, n_)
        if CC and m >= 16 * CC[9] + 24: wait3(allowed, m)
        else: wait2(allowed(KW[0]), allowed(KW[0]))
        if m in wosteps:
            wo_load(wi); ops.append("W"); wi += 1
        issue(m + LA, True); ops.append("K%d" % (m + LA))
        kcompute(m % 16, vRing + 4 * (m % 16), sreg(m // 16))
    assert wi == 16 and max(wosteps) <= 127 - LA
    vnext = [LA]
    def vhook():
        if SMI and vnext[0] < 16:
            a("s_waitcnt vmcnt(%d)" % (SW - 1))
            issue(vnext[0], False); vnext[0] += 1
    if not SMI:
        for n in range(LA, VT):
            issue(n, False)
    stamp("kdone")
    vhook()
    vm = vT
    a("v_max3_f32 v%d, v%d, v%d, v%d" % (vm, vS, vS + 1, vS + 2))
    a("v_max3_f32 v%d, v%d, v%d, v%d" % (vm, vm, vS + 3, vS + 4))
    a("v_max3_f32 v%d, v%d, v%d, v%d" % (vm, vm, vS + 5, vS + 6))
    a("v_max_f32 v%d, v%d, v%d" % (vm, vm, vS + 7))
    wave_reduce("v_max_f32", vm, sT2)
    vhook()
    for t in range(8):
        a("v_subrev_f32 v%d, s%d, v%d" % (vT + 2 + t, sT2, vS + t))
    for t in range(8):
        a("v_mul_f32 v%d, 0x%x, v%d" % (vT + 2 + t, LOG2E, vT + 2 + t))
    for t in range(8):
        a("v_exp_f32 v%d, v%d" % (vT + 2 + t, vT + 2 + t))
    a("v_add_f32 v%d, v%d, v%d" % (vT + 1, vT + 2, vT + 3))
    for t in range(2, 8):
        a("v_add_f32 v%d, v%d, v%d" % (vT + 1, vT + 1, vT + 2 + t))
    wave_reduce("v_add_f32", vT + 1, sT3)
    a("v_mov_b32 v%d, s%d" % (vT + 2, sT2)); a("v_mov_b32 v%d, s%d" % (vT + 3, sT3))
    a("s_lshl_b32 s%d, s%d, 3" % (sT2, sWAVE))
    a("v_mov_b32 v%d, s%d" % (vT + 4, sT2))
    a("v_mov_b32 v%d, 0" % (vT + 6)); a("v_mov_b32 v%d, 1" % (vT + 7))
    a("s_mov_b64 exec, 1")
    a("ds_write_b64 v%d, v[%d:%d] offset:%d" % (vT + 4, vT + 2, vT + 3, L_ST))
    a("ds_add_u32 v%d, v%d offset:%d" % (vT + 6, vT + 7, L_CNT + 12))
    a("s_mov_b64 exec, -1")
    a("v_and_b32 v%d, 7, v%d" % (vT + 5, vLane))
    a("v_lshlrev_b32 v%d, 3, v%d" % (vT + 5, vT + 5))
    assert vnext[0] + 2 <= 12 and VT <= 12
    wo_transpose(vhook)
    vhook()
    lds_wait(L_CNT + 12, 8, "sm", vT + 6, vT + 7, 0)
    stamp("B2")
    vhook()
    a("ds_read_b64 v[%d:%d], v%d offset:%d" % (vT + 2, vT + 3, vT + 5, L_ST))
    a("s_waitcnt lgkmcnt(0)")
    vMx = vT + 4
    a("v_max_f32_dpp v%d, v%d, v%d row_ror:4 row_mask:0xf bank_mask:0xf" % (vMx, vT + 2, vT + 2))
    a("v_max_f32_dpp v%d, v%d, v%d row_ror:2 row_mask:0xf bank_mask:0xf" % (vMx, vMx, vMx))
    a("v_max_f32_dpp v%d, v%d, v%d row_ror:1 row_mask:0xf bank_mask:0xf" % (vMx, vMx, vMx))
    a("v_sub_f32 v%d, v%d, v%d" % (vT + 2, vT + 2, vMx))
    for t in range(8):
        a("v_sub_f32 v%d, v%d, v%d" % (vS + t, vS + t, vMx))
    a("v_mul_f32 v%d, 0x%x, v%d" % (vT + 2, LOG2E, vT + 2))
    for t in range(8):
        a("v_mul_f32 v%d, 0x%x, v%d" % (vS + t, LOG2E, vS + t))
    a("v_exp_f32 v%d, v%d" % (vT + 2, vT + 2))
    for t in range(8):
        a("v_exp_f32 v%d, v%d" % (vS + t, vS + t))
    a("v_mul_f32 v%d, v%d, v%d" % (vT + 2, vT + 2, vT + 3))
    for r in (4, 2, 1):
        a("v_add_f32_dpp v%d, v%d, v%d row_ror:%d row_mask:0xf bank_mask:0xf" % (vT + 2, vT + 2, vT + 2, r))
    vhook()
    a("v_rcp_f32 v%d, v%d" % (vT + 3, vT + 2))
    for t in range(8):
        div1(vT + 4, sreg(t), vT + 2, vT + 3, vT + 5)
        a("v_cvt_pk_bf16_f32 v%d, v%d, v%d" % (vT + 6 + (t % 2), vT + 4, vT + 4))
        a("ds_write_b32 v%d, v%d offset:%d" % (vPW, vT + 6 + (t % 2), L_P + 64 * t))
    if not (RC or CC): a("ds_read_b128 v[%d:%d], v%d offset:%d" % (vP0, vP0 + 3, vPR, L_P))
    for r in range(4):
        a("v_mov_b32 v%d, 0" % (vAcc + r))
    vhook()
    tail_prep("ta")
    if SMI: VT = vnext[0]
    stamp("sm")
    a("; ---- V phase")
    if CW:
        a("s_cmp_eq_u32 s%d, 31" % sH)
        a("s_cselect_b64 s[%d:%d], -1, 0" % (sM1, sM1 + 1))
        a("s_or_b64 vcc, vcc, s[%d:%d]" % (sM1, sM1 + 1))
    a("s_mov_b32 s%d, 0" % sCNT)
    if ad: a("s_memrealtime s[%d:%d]" % (sTS, sTS + 1))
    def vbody(first_skip, w, tagname):
        for n in range(16):
            Pc = vP0 if (n >> 2) % 2 == 0 else vP1
            Pn = vP1 if (n >> 2) % 2 == 0 else vP0
            if CC and n == 8:
                a("s_waitcnt lgkmcnt(0)")
                ctl(str(CC[7] // 2), "s%d" % sT0, "v")
            if RC or CC:
                Pc = (8, 12, 16, 32)[n >> 2]
            elif n % 4 == 0:
                a("s_waitcnt lgkmcnt(0)")
                a("ds_read_b128 v[%d:%d], v%d offset:%d" % (Pn, Pn + 3, vPR, L_P + 4 * n + 16))
            A = vA0 if n % 2 == 0 else vA1
            for r in range(4):
                a("v_and_b32 v%d, v%d, v%d" % (A + r, Pc + (n % 4), vM + r))
            if CC: wait3(lambda w_: w_ - 1, n)
            else: wait2(w[0] - 1, w[1] - 1)
            if STG and n == 16 - LA:
                a("s_cmp_eq_u32 s%d, 7" % sCNT)
                a("s_cselect_b32 s%d, 0, s%d" % (rKV + 2, rKV + 2))
            if first_skip and n < VT - LA:
                a("s_cmp_eq_u32 s%d, 0" % sCNT)
                a("s_cbranch_scc1 L_vsk%s%d" % (tagname, n))
            issue(n + LA, False)
            if first_skip and n < VT - LA:
                a.label("L_vsk%s%d" % (tagname, n))
            if CC and n in (7, 15): a("s_memrealtime s[%d:%d]" % (sTS, sTS + 1))
            if RC and n == 9: refload()
            if (ad or V3 or RC) and n == 14: a("s_memrealtime s[%d:%d]" % (sTS, sTS + 1))
            mfma(vAcc, A, vRing + 4 * (n % R), False)
        a("v_add_u32 v%d, 64, v%d" % (vPR, vPR))
        a("s_add_u32 s%d, s%d, 1" % (sCNT, sCNT))
    if VB:
        a("s_cmp_ge_u32 s%d, %d" % (sB, VB[0]))
        a("s_cbranch_scc0 L_vA")
        a("s_cmp_lt_u32 s%d, %d" % (sB, VB[1]))
        a("s_cbranch_scc0 L_vA")
        cur["pol"] = ""
        a.label("L_vB")
        vbody(True, VW, "x")
        a("s_cmp_lt_u32 s%d, 8" % sCNT)
        a("s_cbranch_scc1 L_vB")
        a("s_branch L_vE")
        cur["pol"] = pol
        a.label("L_vA")
        vbody(True, VW, "y")
        a("s_cmp_lt_u32 s%d, 8" % sCNT)
        a("s_cbranch_scc1 L_vA")
        a.label("L_vE")
    elif CC:
        a("s_memrealtime s[%d:%d]" % (sTS, sTS + 1))
        a("s_mov_b32 s%d, %d" % (sT1, CC[6] // 2 + CC[8]))
        a("s_mov_b32 s%d, %d" % (sT0, CC[6] + CC[8] + CC[7] // 2))
        a.label("L_vloop")
        for k, pr in enumerate((8, 12, 16, 32)):
            a("ds_read_b128 v[%d:%d], v%d offset:%d" % (pr, pr + 3, vPR, L_P + 16 * k))
        a("s_waitcnt lgkmcnt(0)")
        ctl("s%d" % sT1, None, "v" if ENDI < 8 else "")
        a("s_mov_b32 s%d, s%d" % (sMS, sTS))
        a("s_cmp_eq_u32 s%d, 7" % sCNT)
        a("s_cbranch_scc1 L_npv")
        publish("v")
        cload()
        a("s_add_u32 s%d, s%d, 256" % (sEO, sEO))
        vbody(True, None, "c")
        a("s_mov_b32 s%d, %d" % (sT1, CC[7] // 2))
        a("s_mov_b32 s%d, %d" % (sT0, CC[7] + CC[7] // 2))
        a("s_cmp_lt_u32 s%d, 8" % sCNT)
        a("s_cbranch_scc1 L_vloop")
    elif RC:
        a("s_memrealtime s[%d:%d]" % (sTS, sTS + 1))
        a.label("L_vloop")
        a("s_cmp_ge_u32 s%d, 8" % sCNT)
        a("s_cbranch_scc1 L_vend")
        for k, pr in enumerate((8, 12, 16, 32)):
            a("ds_read_b128 v[%d:%d], v%d offset:%d" % (pr, pr + 3, vPR, L_P + 16 * k))
        a("s_waitcnt lgkmcnt(0)")
        a("s_mov_b32 s%d, -100000" % sT0)
        if RT:
            a("s_cmp_eq_u32 s%d, 0" % sCNT)
            a("s_cselect_b32 s%d, %d, %d" % (sMS, RT[0], RT[1])) if False else None
            a("s_mov_b32 s%d, %d" % (sMS, RT[1]))
            a("s_cselect_b32 s%d, %d, s%d" % (sMS, RT[0], sMS))
            a("s_sub_u32 s%d, s%d, s%d" % (sMS, sTS, sMS))
        for r_ in range(len(RC[5])):
            a("s_sub_u32 s%d, s%d, s%d" % (sT2, sMS, sREF + r_))
            a("s_sub_u32 s%d, s%d, s%d" % (sT3, sREF + r_, sST0))
            a("s_cmp_ge_u32 s%d, 0x100000" % sT3)
            a("s_cselect_b32 s%d, s%d, s%d" % (sT2, sT0, sT2))
            a("s_max_i32 s%d, s%d, s%d" % (sT0, sT0, sT2))
        a("s_mov_b32 s%d, s%d" % (sMS, sTS))
        a("s_add_u32 s%d, s%d, 256" % (sEO, sEO))
        a("s_cmp_eq_u32 s%d, 7" % sCNT)
        a("s_cbranch_scc1 L_npv")
        publish("v")
        a("s_cmp_lg_u32 s%d, 0" % sISR)
        a("s_cbranch_scc1 L_vmid")
        a("s_cmp_gt_i32 s%d, %d" % (sT0, RC[4]))
        a("s_cbranch_scc1 L_vbig")
        a("s_cmp_gt_i32 s%d, %d" % (sT0, RC[3]))
        a("s_cbranch_scc1 L_vmid")
        vbody(True, (RC[0], RC[0]), "s")
        a("s_branch L_vloop")
        a.label("L_vmid")
        vbody(True, (RC[1], RC[1]), "m")
        a("s_branch L_vloop")
        a.label("L_vbig")
        vbody(True, (RC[2], RC[2]), "b")
        a("s_branch L_vloop")
        a.label("L_vend")
    elif V3:
        a("s_memrealtime s[%d:%d]" % (sTS, sTS + 1))
        if V3[3] == 0:
            a("s_waitcnt lgkmcnt(0)")
            a("s_sub_u32 s%d, s%d, 1" % (sDL, sTS))
        a.label("L_vloop")
        a("s_cmp_ge_u32 s%d, 8" % sCNT)
        a("s_cbranch_scc1 L_vend")
        a("s_waitcnt lgkmcnt(0)")
        a("s_sub_u32 s%d, s%d, s%d" % (sT2, sTS, sDL))
        a("s_add_u32 s%d, s%d, %d" % (sDL, sDL, V3[4]))
        a("s_cmp_gt_i32 s%d, %d" % (sT2, V3[5]))
        a("s_cbranch_scc1 L_vbig")
        a("s_cmp_gt_i32 s%d, 0" % sT2)
        a("s_cbranch_scc1 L_vmid")
        vbody(True, (V3[0], V3[0]), "s")
        a("s_branch L_vloop")
        a.label("L_vmid")
        vbody(True, (V3[1], V3[1]), "m")
        a("s_branch L_vloop")
        a.label("L_vbig")
        vbody(True, (V3[2], V3[2]), "b")
        a("s_branch L_vloop")
        a.label("L_vend")
    else:
        a.label("L_vloop")
        if ad: adapt()
        vbody(True, VW, "a")
        a("s_cmp_lt_u32 s%d, %d" % (sCNT, 8 - EN))
        a("s_cbranch_scc1 L_vloop")
        if EN:
            a.label("L_vloop2")
            vbody(False, (EW, EW), "b")
            a("s_cmp_lt_u32 s%d, 8" % sCNT)
            a("s_cbranch_scc1 L_vloop2")
    a("s_waitcnt lgkmcnt(0)")
    a("ds_write_b128 v%d, v[%d:%d] offset:%d" % (vPA, vAcc, vAcc + 3, L_OP))
    if tprio is not None: a("s_setprio %d" % tprio)
    stamp("vdone")
    a.label("L_tail")
    a("s_waitcnt lgkmcnt(0)")
    a("s_barrier")
    stamp("B3")
    for w in range(8):
        a("ds_read_b64 v[%d:%d], v38 offset:%d" % (8 + 2 * w, 9 + 2 * w, L_OP + 512 * w))
    a("s_waitcnt lgkmcnt(4)")
    a("v_pk_add_f32 v[8:9], v[8:9], v[10:11]")
    a("v_pk_add_f32 v[12:13], v[12:13], v[14:15]")
    a("s_waitcnt lgkmcnt(0)")
    a("v_pk_add_f32 v[16:17], v[16:17], v[18:19]")
    a("v_pk_add_f32 v[20:21], v[20:21], v[22:23]")
    a("v_pk_add_f32 v[8:9], v[8:9], v[12:13]")
    a("v_pk_add_f32 v[16:17], v[16:17], v[20:21]")
    a("v_pk_add_f32 v[8:9], v[8:9], v[16:17]")
    a("v_cvt_pk_bf16_f32 v8, v8, v9")
    for k in range(8):
        a("ds_bpermute_b32 v%d, v39, v8 offset:%d" % (24 + k, 128 * (k >> 2) + 4 * (k & 3)))
    vNB = 16
    nibs(vNB, 0)
    vD = 72
    a("s_waitcnt lgkmcnt(4)")
    for j in range(8):
        mfma(vD + 4 * j, 24, vW + 32 + 4 * j, True)
    a("s_waitcnt lgkmcnt(0)")
    for j in (0, 4, 1, 5, 2, 6, 3, 7):
        mfma(vD + 4 * j, 28, vW + 4 * j, False)
    for e in range(4):
        a("v_cndmask_b32 v%d, v%d, v%d, s[%d:%d]" % (20 + e, vD + 4 * e, vD + 4 * (e + 4), sM1, sM1 + 1))
    for e in range(4):
        a("v_permlane32_swap_b32 v%d, v%d" % (20 + e, 12 + e))
    for e in range(4):
        a("v_add_f32_dpp v%d, v%d, v%d row_shl:8 row_mask:0xf bank_mask:0x3" % (20 + e, 12 + e, 20 + e))
    for e in range(4):
        a("v_bfi_b32 v%d, 15, v%d, v%d" % (20 + e, vNB + e, 20 + e))
    a("s_mov_b64 exec, 0x00ff00ff")
    a("buffer_store_dwordx4 v[20:23], v3, s[%d:%d], s%d offen %s" % (rWS, rWS + 3, sPUB, stpol))
    a("s_mov_b64 exec, -1")
    stamp("pub")
    is_consumer()
    a("s_cbranch_scc1 L_fin")
    t0, t1, t4, t5, t6 = 8, 9, 12, 13, 14
    SETS = [40, 104, 136][:NSET]
    a("v_lshrrev_b32 v%d, 4, v%d" % (t0, vLane))
    a("v_and_b32 v%d, 15, v%d" % (t1, vLane))
    a("v_mul_u32_u24 v%d, 2304, v%d" % (t0, t0))
    a("v_lshl_add_u32 v%d, v%d, 4, v%d" % (t0, t1, t0))
    a("s_mul_i32 s%d, s%d, %d" % (sT2, sB, 32 * 2304))
    a("s_add_u32 s%d, s%d, s%d" % (sT2, sT2, sU))
    def gather_issue(G):
        a("s_mov_b32 s%d, s%d" % (sT3, sT2))
        for i in range(8):
            a("buffer_load_dwordx4 v[%d:%d], v%d, s[%d:%d], s%d offen sc1" % (G + 4 * i, G + 3 + 4 * i, t0, rWS, rWS + 3, sT3))
            if i < 7: a("s_add_u32 s%d, s%d, %d" % (sT3, sT3, 4 * 2304))
    xfin_addr(t4, t5)
    a("v_lshlrev_b32 v%d, 2, v%d" % (t5, t4))
    a("v_lshlrev_b32 v%d, 1, v%d" % (t4, t4))
    a("s_lshl_b32 s%d, s%d, 7" % (sT1, sUN))
    a("buffer_load_ushort v%d, v%d, s[%d:%d], s%d offen" % (vXf, t4, rA, rA + 3, sT1))
    if P0: a("s_sleep %d" % P0)
    gather_issue(SETS[0])
    a("v_add_u32 v%d, s%d, v%d" % (t5, sU, t5))
    a("ds_read_b32 v%d, v%d offset:%d" % (t6, t5, L_G))
    a("v_mov_b32 v10, 0")
    a("ds_read_b32 v15, v10 offset:%d" % (L_CNT + 16))
    a("s_mul_i32 s%d, s%d, 1152" % (sT0, sB))
    srd_off(rB, sOUT, sT0, 1160)
    a("s_mov_b32 s%d, 0" % sCNT)
    a("s_waitcnt lgkmcnt(0)")
    tag16(t5, 15, 0)
    nibs(vNB, t5)
    for G in SETS[1:]:
        a("s_sleep %d" % (10 // NSET))
        gather_issue(G)
    a.label("L_poll")
    for si, G in enumerate(SETS):
        a("s_waitcnt vmcnt(%d)" % (8 * (NSET - 1)))
        for k in range(4):
            for i in range(0, 8, 2):
                a("v_bitop3_b32 v%d, v%d, v%d, v%d bitop3:0x7e" % (24 + 4 * k + i // 2, G + 4 * i + k, G + 4 * i + 4 + k, vNB + k))
        for p_ in range(4):
            a("v_or3_b32 v%d, v%d, v%d, v%d" % (24 + p_, 24 + p_, 28 + p_, 32 + p_))
        for p_ in range(4):
            a("v_or_b32 v%d, v%d, v%d" % (24 + p_, 24 + p_, 36 + p_))
        a("v_or3_b32 v28, v24, v25, v26")
        a("v_or_b32 v28, v28, v27")
        a("v_and_b32 v28, 15, v28")
        a("v_cmp_ne_u32 vcc, 0, v28")
        a("s_cbranch_vccz L_got%d" % si)
        if PS: a("s_sleep %d" % PS)
        if not SEL:
            gather_issue(G)
        else:
            for p_ in range(4):
                a("v_and_b32 v28, 15, v%d" % (24 + p_))
                a("v_cmp_ne_u32 vcc, 0, v28")
                a("s_add_u32 s%d, s%d, %d" % (sT3, sT2, 8 * 2304 * p_))
                a("s_cbranch_vccz L_sk%d%d" % (si, p_))
                a("buffer_load_dwordx4 v[%d:%d], v%d, s[%d:%d], s%d offen sc1" % (G + 8 * p_, G + 8 * p_ + 3, t0, rWS, rWS + 3, sT3))
                a("s_add_u32 s%d, s%d, %d" % (sT3, sT3, 4 * 2304))
                a("buffer_load_dwordx4 v[%d:%d], v%d, s[%d:%d], s%d offen sc1" % (G + 8 * p_ + 4, G + 8 * p_ + 7, t0, rWS, rWS + 3, sT3))
                a.label("L_sk%d%d" % (si, p_))
    a("s_add_u32 s%d, s%d, 1" % (sCNT, sCNT))
    a("s_cmp_lt_u32 s%d, 0x100000" % sCNT)
    a("s_cbranch_scc1 L_poll")
    a("s_branch L_fin")
    def xreduce(g):
        a("v_permlane32_swap_b32 v%d, v%d" % (g, g + 1))
        a("v_permlane32_swap_b32 v%d, v%d" % (g + 2, g + 3))
        a("v_add_f32 v%d, v%d, v%d" % (g, g, g + 1))
        a("v_add_f32 v%d, v%d, v%d" % (g + 2, g + 2, g + 3))
        a("v_permlane16_swap_b32 v%d, v%d" % (g, g + 2))
        a("v_add_f32 v%d, v%d, v%d" % (g, g, g + 2))
    for si, G in reversed(list(enumerate(SETS))):
        a.label("L_got%d" % si)
        for k in range(32):
            a("v_and_b32 v%d, -16, v%d" % (G + k, G + k))
        for st in (16, 8, 4):
            for k in range(0, st, 2):
                d = G + k if st > 4 else 24 + k
                a("v_pk_add_f32 v[%d:%d], v[%d:%d], v[%d:%d]" % (d, d + 1, G + k, G + 1 + k, G + k + st, G + 1 + k + st))
        if si > 0: a("s_branch L_fsum")
    a.label("L_fsum")
    G = 24
    xreduce(G)
    a("v_lshlrev_b32 v%d, 16, v%d" % (vXf, vXf))
    rbf(G, G)
    a("v_mul_f32 v%d, v%d, v%d" % (G, G, t6))
    rbf(G, G)
    a("v_add_f32 v%d, v%d, v%d" % (G, G, vXf))
    a("v_cvt_pk_bf16_f32 v%d, v%d, v%d" % (G, G, G))
    a("buffer_store_short v%d, v%d, s[%d:%d], s%d offen" % (G, t4, rB, rB + 3, sT1))
    stamp("fin")
    a.label("L_fin")
    stamp_flush()
    a("s_endpgm")
    a.label("L_w")
    if wprio: a("s_setprio %d" % wprio)
    a("s_sub_u32 s%d, s%d, 8" % (sWK, sWAVE))
    a("v_mov_b32 v8, 0"); a("v_mov_b32 v9, 0"); a("v_mov_b32 v10, 0"); a("v_mov_b32 v11, 0")
    a("ds_write_b128 v8, v[8:11] offset:%d" % L_CNT)
    a("ds_write_b128 v8, v[8:11] offset:%d" % (L_CNT + 16))
    a("v_lshlrev_b32 v0, 1, v%d" % vLane)
    a("v_lshrrev_b32 v21, 4, v%d" % vLane)
    a("v_and_b32 v22, 15, v%d" % vLane)
    a("v_mul_u32_u24 v3, 0x%x, v21" % (36 * 8192))
    a("v_lshl_add_u32 v3, v22, 4, v3")
    a("s_mul_i32 s%d, s%d, 0x%x" % (sT2, sWK, 144 * 8192))
    a("s_waitcnt lgkmcnt(0)")
    a("s_barrier")
    a("s_or_b32 s%d, s2, s%d" % (sT3, sWK))
    a("s_cmp_lg_u32 s%d, 0" % sT3)
    a("s_cbranch_scc1 L_wni")
    a("s_memrealtime s[%d:%d]" % (sTS, sTS + 1))
    a("s_waitcnt lgkmcnt(0)")
    a("s_or_b32 s%d, s%d, 1" % (sT3, sTS))
    a("v_mov_b32 v10, s%d" % sT3)
    a("s_mov_b64 exec, 1")
    a("global_atomic_cmpswap v8, v[10:11], s[%d:%d] sc1" % (sDBG, sDBG + 1))
    a("s_mov_b64 exec, -1")
    a("s_nop 1")
    a.label("L_wni")
    srd_off(rA, sX, sT0, 1160)
    vX = 12
    a("buffer_load_dwordx4 v[8:11], v%d, s[%d:%d], 0 offen nt" % (vOff16, rA, rA + 3))
    a("buffer_load_ushort v20, v0, s[%d:%d], 0 offen offset:1024 nt" % (rA, rA + 3))
    srd_off(rB, sWQ, sT1, "s_sub_u32 s%%d, 0x%x, s%d" % (576 * 8192, sT1))
    vWQ = 24
    NWR = 10
    assert WQ0 < NWR
    if nowq: a("s_mov_b32 s%d, 0x70000000" % sT2)
    a("s_mov_b32 s%d, s%d" % (sWOFF, sT2))
    def wq_load(i):
        r = vWQ + 4 * (i % NWR)
        a("buffer_load_dwordx4 v[%d:%d], v2, s[%d:%d], s%d offen %s" % (r, r + 3, rB, rB + 3, sWOFF, wqpol))
        if i < 35: a("s_add_u32 s%d, s%d, 0x2000" % (sWOFF, sWOFF))
    a("v_mov_b32 v2, v3")
    if WQPF:
        a("v_lshrrev_b32 v23, 1, v%d" % vLane)
        a("v_and_b32 v22, 1, v%d" % vLane)
        a("v_lshlrev_b32 v23, 13, v23")
        a("v_lshl_add_u32 v23, v22, 7, v23")
        a("s_mul_i32 s%d, s%d, 72" % (sT3, sB))
        a("s_mul_i32 s%d, s%d, 18" % (sT2, sWK))
        a("s_add_u32 s%d, s%d, s%d" % (sT3, sT3, sT2))
        a("s_lshl_b32 s%d, s%d, 13" % (sT3, sT3))
        a("s_mov_b32 exec_hi, 15")
        a("buffer_load_dword v71, v23, s[%d:%d], s%d offen %s" % (rB, rB + 3, sT3, pfpol))
        a("s_mov_b32 exec_hi, -1")
    else:
        for i in range(WQ0):
            wq_load(i)
    vACC = 32; vTB = 24; vZ = 64; vXR = 24; vAF = 8; vWO = 68
    STB = (104, 136, 72)
    sROLE, sIDX, sSTR, sBST = sM1, sM1 + 1, sVlo, sVhi
    a("s_add_u32 s%d, s%d, %d" % (sROLE, sJ, JROT))
    a("s_and_b32 s%d, s%d, 31" % (sROLE, sROLE))
    if nomlp: a("s_mov_b32 s%d, 31" % sROLE)
    a("v_and_b32 v69, 7, v%d" % vLane)
    a("v_lshrrev_b32 v70, 3, v%d" % vLane)
    a("s_cmp_eq_u32 s%d, 0" % sWK)
    a("s_cbranch_scc1 L_ns0")
    a("s_cmp_ge_u32 s%d, 18" % sROLE)
    a("s_cbranch_scc1 L_ns2")
    a("s_sub_u32 s%d, s%d, 9" % (sIDX, sROLE))
    a("s_cmp_lt_u32 s%d, 9" % sROLE)
    a("s_cselect_b32 s%d, s%d, s%d" % (sIDX, sROLE, sIDX))
    a("s_cselect_b32 s%d, s%d, s%d" % (sT2, sW1, sW3))
    a("s_cselect_b32 s%d, s%d, s%d" % (sT3, sW1 + 1, sW3 + 1))
    a("s_mul_i32 s%d, s%d, 9" % (sT0, sXG))
    a("s_add_u32 s%d, s%d, s%d" % (sIDX, sIDX, sT0))
    a("s_lshl_b32 s%d, s%d, 7" % (sT0, sIDX))
    a("s_add_u32 s%d, s%d, s%d" % (rKV, sT2, sT0))
    a("s_addc_u32 s%d, s%d, 0" % (rKV + 1, sT3))
    a("s_sub_u32 s%d, 0x%x, s%d" % (rKV + 2, 576 * 9216, sT0))
    a("s_mov_b32 s%d, 9216" % sSTR)
    a("s_mov_b32 s%d, %d" % (sBST, 57 * 9216))
    a("s_mov_b32 s%d, %d" % (sT1, 8 * 9216))
    a("s_branch L_nsj")
    a.label("L_ns2")
    a("s_sub_u32 s%d, s%d, 18" % (sIDX, sROLE))
    a("s_mul_i32 s%d, s%d, %d" % (sT0, sXG, 576 * 1152))
    a("s_lshl_b32 s%d, s%d, 7" % (sT1, sIDX))
    a("s_add_u32 s%d, s%d, s%d" % (sT0, sT0, sT1))
    a("s_cmp_ge_u32 s%d, 27" % sROLE)
    a("s_cselect_b32 s%d, 0, s%d" % (sT0, sT0))
    a("s_cselect_b32 s%d, 0, 0x%x" % (sT1, 4608 * 1152))
    a("s_add_u32 s%d, s%d, s%d" % (rKV, sW2, sT0))
    a("s_addc_u32 s%d, s%d, 0" % (rKV + 1, sW2 + 1))
    a("s_sub_u32 s%d, s%d, s%d" % (rKV + 2, sT1, sT0))
    a("s_mov_b32 s%d, 1152" % sSTR)
    a("s_mov_b32 s%d, %d" % (sBST, 57 * 1152))
    a("s_mov_b32 s%d, %d" % (sT1, 8 * 1152))
    a.label("L_nsj")
    if 'l' in mno: a("s_mov_b32 s%d, 0" % (rKV + 2))
    a("s_sub_u32 s%d, s%d, 1" % (sT2, sWK))
    a("s_mul_i32 s%d, s%d, 192" % (sT2, sT2))
    a("s_mul_i32 s%d, s%d, s%d" % (sOFF, sT2, sSTR))
    a("s_branch L_nse")
    a.label("L_ns0")
    a("s_mul_i32 s%d, s%d, 0x%x" % (sT0, sH, 128 * 1152))
    a("s_add_u32 s%d, s%d, 1024" % (sT0, sT0))
    a("s_add_u32 s%d, s%d, s%d" % (rKV, sWO, sT0))
    a("s_addc_u32 s%d, s%d, 0" % (rKV + 1, sWO + 1))
    a("s_sub_u32 s%d, 0x%x, s%d" % (rKV + 2, 4096 * 1152, sT0))
    if nowo: a("s_mov_b32 s%d, 0" % (rKV + 2))
    a("s_mov_b32 s%d, 1152" % sSTR)
    a("s_mov_b32 s%d, %d" % (sBST, 57 * 1152))
    a("s_mov_b32 s%d, %d" % (sT1, 8 * 1152))
    a("s_mov_b32 s%d, 0" % sOFF)
    a.label("L_nse")
    a("s_mov_b32 s%d, 0x20000" % (rKV + 3))
    a("v_mul_lo_u32 v%d, v70, s%d" % (vWO, sT1))
    a("v_lshl_add_u32 v%d, v69, 4, v%d" % (vWO, vWO))
    def ns_load(k, pace=None):
        r = STB[k // 8] + 4 * (k % 8)
        if pace is not None: a("s_waitcnt vmcnt(%d)" % (pace - 1))
        a("buffer_load_dwordx4 v[%d:%d], v%d, s[%d:%d], s%d offen %s" % (r, r + 3, vWO, rKV, rKV + 3, sOFF, mpol))
        a("s_add_u32 s%d, s%d, s%d" % (sOFF, sOFF, sSTR if k % 8 < 7 else sBST))
    stamp("issued")
    common_setup()
    make_masks(22, 23)
    a("s_mul_i32 s%d, s%d, 2304" % (sT2, sWK))
    a("v_lshl_add_u32 v3, v%d, 5, s%d" % (vLane, sT2))
    a("s_mul_i32 s%d, s%d, 2880" % (sT3, sWK))
    a("v_mul_u32_u24 v0, 144, v21")
    a("v_add_u32 v0, s%d, v0" % sT3)
    a("s_waitcnt vmcnt(%d)" % (1 if WQPF else WQ0))
    for k in range(4):
        a("v_lshlrev_b32 v%d, 16, v%d" % (vX + 2 * k, 8 + k))
        a("v_and_b32 v%d, 0xffff0000, v%d" % (vX + 2 * k + 1, 8 + k))
    a("v_lshlrev_b32 v20, 16, v20")
    vs = 8
    a("v_add_f32 v%d, v%d, v%d" % (vs, vX, vX + 1))
    for t in range(2, 9):
        a("v_add_f32 v%d, v%d, v%d" % (vs, vs, vX + t))
    wave_reduce("v_add_f32", vs, sT3)
    vmean = 9
    a("v_mov_b32 v%d, 0x%x" % (vmean, INV576))
    a("v_mul_f32 v%d, s%d, v%d" % (vmean, sT3, vmean))
    a("v_sub_f32 v10, v%d, v%d" % (vX, vmean))
    a("v_mul_f32 v%d, v10, v10" % vs)
    for t in range(1, 9):
        a("v_sub_f32 v10, v%d, v%d" % (vX + t, vmean))
        a("v_fmac_f32 v%d, v10, v10" % vs)
    wave_reduce("v_add_f32", vs, sT3)
    a("v_mov_b32 v10, 0x%x" % INV576)
    a("v_mul_f32 v10, s%d, v10" % sT3)
    ln_scalars(vmean, 10, 8, 11, 21)
    for t in range(9):
        a("v_sub_f32 v%d, v%d, v8" % (vX + t, vX + t))
    for t in range(9):
        rbf(vX + t, vX + t)
    for t in range(9):
        div1(9, vX + t, 11, 21, 10)
        a("v_cvt_pk_bf16_f32 v%d, v9, v9" % (vX + t))
    a("ds_write_b128 v3, v[12:15] offset:%d" % L_XD)
    a("ds_write_b128 v3, v[16:19] offset:%d" % (L_XD + 16))
    a("v_lshlrev_b32 v22, 2, v%d" % vLane)
    a("v_add_u32 v22, s%d, v22" % sT2)
    a("ds_write_b32 v22, v20 offset:%d" % (L_XD + 2048))
    a("ds_read_b128 v[12:15], v0 offset:%d" % L_XD)
    stamp("ln")
    if WQPF:
        if WQPF == 2: a("s_waitcnt vmcnt(0)")
        for i in range(WQ0):
            wq_load(i)
    nsi = 0
    for i in range(36):
        Xc = 12 if (i >> 2) % 2 == 0 else 16
        Xn = 16 if (i >> 2) % 2 == 0 else 12
        if i + WQ0 < 36: wq_load(i + WQ0)
        elif nsi < NC:
            ns_load(nsi); nsi += 1
        if i % 4 == 0:
            a("s_waitcnt lgkmcnt(0)")
            if i + 4 < 36:
                a("ds_read_b128 v[%d:%d], v0 offset:%d" % (Xn, Xn + 3, L_XD + 4 * i + 16))
        for r in range(4):
            a("v_and_b32 v%d, v%d, v%d" % (20 + r, Xc + (i % 4), vM + r))
        a("s_waitcnt vmcnt(%d)" % (min(WQ0, 35 - i) + nsi))
        mfma(8, 20, vWQ + 4 * (i % NWR), i == 0)
    for k in range(NC2):
        ns_load(nsi); nsi += 1
    assert nsi <= 16
    a("v_lshlrev_b32 v%d, 4, v%d" % (vOff16, vLane))
    part_addr(0, 3, sWK)
    a("ds_write_b128 v0, v[8:11] offset:%d" % L_QP)
    a("v_mov_b32 v12, 0"); a("v_mov_b32 v13, 1")
    a("s_mov_b64 exec, 1")
    a("ds_add_rtn_u32 v14, v12, v13 offset:%d" % (L_CNT + 8))
    a("s_mov_b64 exec, -1")
    a("v_lshlrev_b32 v15, 3, v%d" % vLane)
    a("s_waitcnt lgkmcnt(0)")
    a("v_readfirstlane_b32 s%d, v14" % sT2)
    a("s_cmp_lg_u32 s%d, 3" % sT2)
    a("s_cbranch_scc1 L_qnl")
    for k in range(4):
        a("ds_read_b64 v[%d:%d], v15 offset:%d" % (16 + 2 * k, 17 + 2 * k, L_QP + 512 * k))
    a("v_lshlrev_b32 v15, 2, v%d" % vLane)
    a("s_waitcnt lgkmcnt(0)")
    a("v_pk_add_f32 v[16:17], v[16:17], v[18:19]")
    a("v_pk_add_f32 v[20:21], v[20:21], v[22:23]")
    a("v_pk_add_f32 v[16:17], v[16:17], v[20:21]")
    a("v_cvt_pk_bf16_f32 v16, v16, v17")
    a("ds_write_b32 v15, v16 offset:%d" % L_QF)
    a("s_mov_b64 exec, 1")
    a("ds_write_b32 v12, v13 offset:%d" % (L_CNT + 20))
    a("s_mov_b64 exec, -1")
    a.label("L_qnl")
    if wprio: a("s_setprio 0")
    stamp("qmf")
    a("s_cmp_eq_u32 s%d, 0" % sWK)
    a("s_cbranch_scc1 L_w0")
    a("s_cmp_ge_u32 s%d, 27" % sROLE)
    a("s_cbranch_scc1 L_fin")
    a("s_sub_u32 s%d, s%d, 1" % (sWK, sWK))
    a("s_mov_b32 s%d, 0x05040100" % sSEL0)
    a("s_mov_b32 s%d, 0x07060302" % sSEL1)
    a("s_cmp_ge_u32 s%d, 18" % sROLE)
    a("s_cbranch_scc1 L_dn")
    srd(rA, sX, 8 * 1152 if 'x' not in mno else 0)
    a("v_mul_u32_u24 v22, 1152, v69")
    a("v_lshl_add_u32 v22, v70, 4, v22")
    for blk in range(9):
        a("buffer_load_dwordx4 v[%d:%d], v22, s[%d:%d], 0 offen offset:%d" % (vXR + 4 * blk, vXR + 4 * blk + 3, rA, rA + 3, 128 * blk))
    a("s_mul_i32 s%d, s%d, 384" % (sT2, sWK))
    for q in range(3):
        a("buffer_load_dwordx4 v[%d:%d], v22, s[%d:%d], s%d offen offset:%d" % (vAF + 4 * q, vAF + 4 * q + 3, rA, rA + 3, sT2, 128 * q))
    a("v_mov_b32 v61, 0x3f803f80")
    a("s_waitcnt vmcnt(0)")
    for k in range(nsi, nsi + MW):
        ns_load(k)
    for k in range(36):
        a("v_dot2_f32_bf16 v60, v%d, v61, %s" % (vXR + k, "0" if k == 0 else "v60"))
    def red8(v, t):
        a("v_add_f32_dpp v%d, v%d, v%d row_ror:8 row_mask:0xf bank_mask:0xf" % (v, v, v))
        a("v_mov_b32 v%d, v%d" % (t, v))
        a("v_permlane16_swap_b32 v%d, v%d" % (v, t))
        a("v_add_f32 v%d, v%d, v%d" % (v, v, t))
        a("v_mov_b32 v%d, v%d" % (t, v))
        a("v_permlane32_swap_b32 v%d, v%d" % (v, t))
        a("v_add_f32 v%d, v%d, v%d" % (v, v, t))
    red8(60, 61)
    a("v_mul_f32 v60, 0x%x, v60" % (INV576 | 0x80000000))
    a("v_mov_b32 v61, v60")
    a("v_mov_b32 v62, 0"); a("v_mov_b32 v63, 0")
    for k in range(36):
        t = 20 + 2 * (k % 2)
        a("v_lshlrev_b32 v%d, 16, v%d" % (t, vXR + k))
        a("v_and_b32 v%d, 0xffff0000, v%d" % (t + 1, vXR + k))
        a("v_pk_add_f32 v[%d:%d], v[%d:%d], v[60:61]" % (t, t + 1, t, t + 1))
        a("v_pk_fma_f32 v[62:63], v[%d:%d], v[%d:%d], v[62:63]" % (t, t + 1, t, t + 1))
    a("v_add_f32 v62, v62, v63")
    red8(62, 63)
    a("v_mul_f32 v62, 0x%x, v62" % INV576)
    a("v_sub_f32 v60, 0, v60")
    ln_scalars(60, 62, 61, 63, 22)
    for k in range(12):
        a("v_lshlrev_b32 v24, 16, v%d" % (vAF + k))
        a("v_and_b32 v25, 0xffff0000, v%d" % (vAF + k))
        a("v_sub_f32 v24, v24, v61")
        a("v_sub_f32 v25, v25, v61")
        a("v_cvt_pk_bf16_f32 v25, v24, v25")
        a("v_lshlrev_b32 v24, 16, v25")
        a("v_and_b32 v25, 0xffff0000, v25")
        div1(26, 24, 63, 22, 27)
        div1(24, 25, 63, 22, 27)
        a("v_cvt_pk_bf16_f32 v%d, v26, v24" % (vAF + k))
    for k in range(nsi + MW, 24):
        ns_load(k, MW)
    stamp("aux_ln")
    lds_wait(L_CNT + 16, 1, "n1", 21, 22, 8)
    a("s_branch L_mm")
    a.label("L_dn")
    for k in range(nsi, 24):
        ns_load(k, MW)
    lds_wait(L_CNT + 16, 1, "n2", 21, 22, 8)
    tag16(21, 22, 0)
    a("s_mul_i32 s%d, s%d, 9" % (sT2, sXG))
    a("s_mul_i32 s%d, s%d, 3" % (sT3, sWK))
    a("s_add_u32 s%d, s%d, s%d" % (sT2, sT2, sT3))
    a("s_lshl_b32 s%d, s%d, 12" % (sT2, sT2))
    a("s_add_u32 s%d, s%d, 0x%x" % (sT2, sT2, WS_H))
    a("s_mov_b32 s%d, 0" % sCNT)
    HR = [24 + 4 * k for k in range(12)]
    for k in range(HD): a("s_sleep 127")
    if PROBE:
        a("s_add_u32 s%d, s%d, %d" % (sT3, sT2, 2 * 4096))
        a("s_mov_b64 exec, 0xff")
        a.label("L_hq")
        a("buffer_load_dwordx4 v[24:27], v%d, s[%d:%d], s%d offen sc1" % (vOff16, rWS, rWS + 3, sT3))
        a("buffer_load_dwordx4 v[28:31], v%d, s[%d:%d], s%d offen offset:2048 sc1" % (vOff16, rWS, rWS + 3, sT3))
        a("s_waitcnt vmcnt(0)")
        a("v_bitop3_b32 v8, v24, v28, v21 bitop3:0x7e")
        a("v_and_b32 v8, 0xffff, v8")
        a("v_cmp_ne_u32 vcc, 0, v8")
        a("s_cbranch_vccz L_hqo")
        a("s_add_u32 s%d, s%d, 1" % (sCNT, sCNT))
        a("s_cmp_gt_u32 s%d, 0x40000" % sCNT)
        a("s_cbranch_scc1 L_hqo")
        for k in range(hs2): a("s_sleep %d" % hsleep)
        a("s_branch L_hq")
        a.label("L_hqo")
        a("s_mov_b64 exec, -1")
    a.label("L_hp")
    a("s_mov_b32 s%d, s%d" % (sT3, sT2))
    if 'g' in mno: a("s_mov_b32 s%d, 0x7000000" % sT3)
    for k in range(12):
        a("buffer_load_dwordx4 v[%d:%d], v%d, s[%d:%d], s%d offen offset:%d sc1" % (HR[k], HR[k] + 3, vOff16, rWS, rWS + 3, sT3, 1024 * (k % 4)))
        if k % 4 == 3 and k < 11: a("s_add_u32 s%d, s%d, 4096" % (sT3, sT3))
    a("s_waitcnt vmcnt(0)")
    a("v_mov_b32 v20, 0")
    for k in range(12):
        a("v_bitop3_b32 v8, v%d, v%d, v21 bitop3:0x7e" % (HR[k], HR[k] + 1))
        a("v_bitop3_b32 v9, v%d, v%d, v21 bitop3:0x7e" % (HR[k] + 2, HR[k] + 3))
        a("v_or3_b32 v20, v20, v8, v9")
    a("v_and_b32 v20, 0xffff, v20")
    a("v_cmp_ne_u32 vcc, 0, v20")
    a("s_cbranch_vccz L_hok" if 'h' not in mno else "s_branch L_hok")
    a("s_add_u32 s%d, s%d, 1" % (sCNT, sCNT))
    a("s_cmp_gt_u32 s%d, 0x40000" % sCNT)
    a("s_cbranch_scc1 L_hok")
    a("s_sleep %d" % hsleep)
    a("s_branch L_hp")
    a.label("L_hok")
    for q in range(3):
        for hf in range(2):
            sg = HR[4 * q + hf]; up = HR[4 * q + 2 + hf]
            for e in range(4):
                a("v_and_b32 v%d, 0xffff0000, v%d" % (sg + e, sg + e))
                a("v_and_b32 v%d, 0xffff0000, v%d" % (up + e, up + e))
                a("v_mul_f32 v%d, v%d, v%d" % (sg + e, sg + e, up + e))
            a("v_cvt_pk_bf16_f32 v%d, v%d, v%d" % (vAF + 4 * q + 2 * hf, sg, sg + 1))
            a("v_cvt_pk_bf16_f32 v%d, v%d, v%d" % (vAF + 4 * q + 2 * hf + 1, sg + 2, sg + 3))
    stamp("aux_h")
    a.label("L_mm")
    def blk_mfma(q, A, first_zero):
        for j in range(8):
            B = vTB + 4 * (j % 2)
            for r in range(4):
                s0 = STB[q] + 4 * (2 * r + 1) + (j >> 1)
                s1 = STB[q] + 4 * (2 * r) + (j >> 1)
                a("v_perm_b32 v%d, v%d, v%d, s%d" % (B + r, s0, s1, sSEL1 if j & 1 else sSEL0))
            mfma(vACC + 4 * j, A, B, first_zero)
    for q in range(3):
        a("s_waitcnt vmcnt(%d)" % (16 - 8 * q))
        blk_mfma(q, vAF + 4 * q, q == 0)
    for j in range(8):
        D = vACC + 4 * j
        a("v_permlane32_swap_b32 v%d, v%d" % (D, D + 1))
        a("v_permlane32_swap_b32 v%d, v%d" % (D + 2, D + 3))
    for j in range(8):
        D = vACC + 4 * j
        a("v_add_f32_dpp v%d, v%d, v%d row_shl:8 row_mask:0xf bank_mask:0x3" % (vZ + j, D + 1, D))
        a("v_add_f32_dpp v%d, v%d, v%d row_shr:8 row_mask:0xf bank_mask:0xc" % (vZ + j, D + 2, D + 3))
    a("s_lshl_b32 s%d, s%d, 11" % (sT2, sWK))
    a("v_lshlrev_b32 v23, 5, v%d" % vLane)
    a("v_add_u32 v20, s%d, v23" % sT2)
    a("ds_write_b128 v20, v[%d:%d] offset:%d" % (vZ, vZ + 3, L_ZX))
    a("ds_write_b128 v20, v[%d:%d] offset:%d" % (vZ + 4, vZ + 7, L_ZX + 16))
    lds_sig(L_CNT, 21, 24)
    a("s_cmp_lg_u32 s%d, 0" % sWK)
    a("s_cbranch_scc1 L_fin")
    lds_wait(L_CNT, 3, "z", 21, 24, 2)
    for k in range(3):
        a("ds_read_b128 v[%d:%d], v23 offset:%d" % (vACC + 8 * k, vACC + 8 * k + 3, L_ZX + 2048 * k))
        a("ds_read_b128 v[%d:%d], v23 offset:%d" % (vACC + 8 * k + 4, vACC + 8 * k + 7, L_ZX + 2048 * k + 16))
    a("v_bfe_u32 v24, v%d, 3, 2" % vLane)
    a("v_lshlrev_b32 v24, 1, v24")
    a("v_lshrrev_b32 v25, 5, v%d" % vLane)
    a("v_add_u32 v24, v24, v25")
    a("v_and_b32 v25, 7, v%d" % vLane)
    a("s_waitcnt lgkmcnt(0)")
    for e in range(0, 8, 2):
        a("v_pk_add_f32 v[%d:%d], v[%d:%d], v[%d:%d]" % (vZ + e, vZ + e + 1, vACC + e, vACC + e + 1, vACC + 8 + e, vACC + 9 + e))
    for e in range(0, 8, 2):
        a("v_pk_add_f32 v[%d:%d], v[%d:%d], v[%d:%d]" % (vZ + e, vZ + e + 1, vZ + e, vZ + e + 1, vACC + 16 + e, vACC + 17 + e))
    a("s_cmp_ge_u32 s%d, 18" % sROLE)
    a("s_cbranch_scc1 L_dnp")
    for j in range(8):
        rbf(vZ + j, vZ + j)
    a("s_lshl_b32 s%d, s%d, 12" % (sT2, sIDX))
    a("s_add_u32 s%d, s%d, 0x%x" % (sT2, sT2, WS_H + 2048))
    a("s_cmp_ge_u32 s%d, 9" % sROLE)
    a("s_cbranch_scc1 L_upp")
    a("s_sub_u32 s%d, s%d, 2048" % (sT2, sT2))
    for j in range(8):
        silu(vZ + j, vZ + j, 26)
        rbf(vZ + j, vZ + j)
    a.label("L_upp")
    tag16(21, 22, 5)
    for j in range(8):
        a("v_or_b32 v%d, v%d, v21" % (vZ + j, vZ + j))
    a("v_lshl_add_u32 v24, v25, 3, v24")
    a("v_lshlrev_b32 v24, 4, v24")
    if 's' in mno: a("s_mov_b32 s%d, 0x7000000" % sT2)
    a("buffer_store_dwordx4 v[%d:%d], v24, s[%d:%d], s%d offen sc1" % (vZ, vZ + 3, rWS, rWS + 3, sT2))
    a("buffer_store_dwordx4 v[%d:%d], v24, s[%d:%d], s%d offen offset:1024 sc1" % (vZ + 4, vZ + 7, rWS, rWS + 3, sT2))
    stamp("aux_s1")
    a("s_branch L_fin")
    a.label("L_dnp")
    tag16(21, 22, 0)
    nibs(8, 21)
    for j in range(8):
        a("v_bfi_b32 v%d, 15, v%d, v%d" % (vZ + j, 8 + (j % 4), vZ + j))
    a("v_mul_u32_u24 v24, %d, v24" % (8 * 2304))
    a("v_lshl_add_u32 v24, v25, 4, v24")
    a("s_mul_i32 s%d, s%d, 2304" % (sT2, sXG))
    a("s_lshl_b32 s%d, s%d, 8" % (sT3, sIDX))
    a("s_add_u32 s%d, s%d, s%d" % (sT2, sT2, sT3))
    a("s_add_u32 s%d, s%d, 0x%x" % (sT2, sT2, WS_MO))
    if 's' in mno: a("s_mov_b32 s%d, 0x7000000" % sT2)
    a("buffer_store_dwordx4 v[%d:%d], v24, s[%d:%d], s%d offen sc1" % (vZ, vZ + 3, rWS, rWS + 3, sT2))
    a("buffer_store_dwordx4 v[%d:%d], v24, s[%d:%d], s%d offen offset:128 sc1" % (vZ + 4, vZ + 7, rWS, rWS + 3, sT2))
    stamp("aux_mlp")
    a("s_branch L_fin")
    a.label("L_w0")
    if WOPF: wo_prefetch()
    a("v_mov_b32 v12, 0")
    a("global_load_dword v13, v12, s[%d:%d] sc1" % (sDBG, sDBG + 1))
    a("s_memrealtime s[%d:%d]" % (sTS, sTS + 1))
    a("s_waitcnt vmcnt(0) lgkmcnt(0)")
    a("v_readfirstlane_b32 s%d, v13" % sT2)
    a("s_cmp_lg_u32 s%d, 0" % sT2)
    a("s_cbranch_scc1 L_nok")
    a("s_or_b32 s%d, s%d, 1" % (sT3, sTS))
    a("v_mov_b32 v14, s%d" % sT3)
    a("v_mov_b32 v15, 0")
    a("s_mov_b64 exec, 1")
    a("global_atomic_cmpswap v13, v12, v[14:15], s[%d:%d] sc0 sc1" % (sDBG, sDBG + 1))
    a("s_mov_b64 exec, -1")
    a("s_waitcnt vmcnt(0)")
    a("v_readfirstlane_b32 s%d, v13" % sT2)
    a("s_cmp_eq_u32 s%d, 0" % sT2)
    a("s_cselect_b32 s%d, s%d, s%d" % (sT2, sT3, sT2))
    a.label("L_nok")
    a("v_mov_b32 v15, s%d" % sT2)
    a("ds_write_b32 v12, v15 offset:%d" % (L_CNT + 16))
    for k in range(nsi, 16):
        ns_load(k, 3)
    a("s_waitcnt vmcnt(0)")
    wo_transpose()
    stamp("aux_w")
    is_consumer()
    a("s_cbranch_scc1 L_w0t")
    lds_wait(L_CNT + 12, 8, "g", 8, 9, 64)
    tag16(8, 15, 0)
    nibs(16, 8)
    a("v_lshrrev_b32 v8, 4, v%d" % vLane)
    a("v_and_b32 v9, 15, v%d" % vLane)
    a("v_mul_u32_u24 v8, 2304, v8")
    a("v_lshl_add_u32 v8, v9, 4, v8")
    a("s_mul_i32 s%d, s%d, %d" % (sT2, sB, 8 * 2304))
    a("s_add_u32 s%d, s%d, 0x%x" % (sT2, sT2, WS_MO))
    a("s_add_u32 s%d, s%d, %d" % (sT3, sT2, 4 * 2304))
    xfin_addr(10, 11)
    a("v_and_b32 v10, 7, v%d" % vLane)
    a("v_lshl_add_u32 v10, v10, 3, v11")
    a("v_bfe_u32 v11, v%d, 3, 1" % vLane)
    a("v_lshl_add_u32 v10, v11, 2, v10")
    a("v_lshlrev_b32 v10, 2, v10")
    a("s_mov_b32 s%d, 0" % sCNT)
    GB = 28
    a.label("L_gp")
    for u in range(9):
        a("buffer_load_dwordx4 v[%d:%d], v8, s[%d:%d], s%d offen offset:%d sc1" % (GB + 8 * u, GB + 8 * u + 3, rWS, rWS + 3, sT2, 256 * u))
        a("buffer_load_dwordx4 v[%d:%d], v8, s[%d:%d], s%d offen offset:%d sc1" % (GB + 8 * u + 4, GB + 8 * u + 7, rWS, rWS + 3, sT3, 256 * u))
    a("s_waitcnt vmcnt(0)")
    a("v_mov_b32 v24, 0")
    for u in range(9):
        for k in range(0, 4, 2):
            a("v_bitop3_b32 v25, v%d, v%d, v%d bitop3:0x7e" % (GB + 8 * u + k, GB + 8 * u + 4 + k, 16 + k))
            a("v_bitop3_b32 v26, v%d, v%d, v%d bitop3:0x7e" % (GB + 8 * u + k + 1, GB + 8 * u + 5 + k, 17 + k))
            a("v_or3_b32 v24, v24, v25, v26")
    a("v_and_b32 v24, 15, v24")
    a("v_cmp_ne_u32 vcc, 0, v24")
    a("s_cbranch_vccz L_gok" if not (nomlp or mno) else "s_branch L_gok")
    a("s_add_u32 s%d, s%d, 1" % (sCNT, sCNT))
    a("s_cmp_gt_u32 s%d, 0x40000" % sCNT)
    a("s_cbranch_scc1 L_fin")
    a("s_sleep 64")
    a("s_branch L_gp")
    a.label("L_gok")
    for u in range(9):
        g = GB + 8 * u
        for k in range(8):
            a("v_and_b32 v%d, -16, v%d" % (g + k, g + k))
        a("v_pk_add_f32 v[%d:%d], v[%d:%d], v[%d:%d]" % (g, g + 1, g, g + 1, g + 4, g + 5))
        a("v_pk_add_f32 v[%d:%d], v[%d:%d], v[%d:%d]" % (g + 2, g + 3, g + 2, g + 3, g + 6, g + 7))
        xreduce(g)
        rbf(g, g)
        silu(g + 1, g, g + 2)
        rbf(g + 1, g + 1)
        a("ds_write_b32 v10, v%d offset:%d" % (g + 1, L_G + 256 * u))
    stamp("aux_red")
    a.label("L_w0t")
    tail_prep("tw")
    a("s_setprio 3")
    a("s_branch L_tail")
    a.label("L_end")
    a("s_endpgm")
    body = a.finalize()
    out = HEADER
    out += "; @launch grid=(256,1,1) block=(768,1,1) lds=%d\n" % L_END
    out += DOC
    out += '.amdgcn_target "amdgcn-amd-amdhsa--gfx950"\n.text\n.globl %s\n.p2align 8\n.type %s,@function\n' % (K, K)
    out += body
    out += '.section .rodata,"a"\n.p2align 6\n.amdhsa_kernel %s\n' % K
    out += "  .amdhsa_next_free_vgpr 168\n  .amdhsa_next_free_sgpr %d\n  .amdhsa_accum_offset 168\n" % (100 if (ts or RC or CC) else 72)
    out += "  .amdhsa_group_segment_fixed_size 0\n  .amdhsa_kernarg_size 96\n  .amdhsa_user_sgpr_count 2\n"
    out += "  .amdhsa_user_sgpr_kernarg_segment_ptr 1\n  .amdhsa_system_sgpr_workgroup_id_x 1\n.end_amdhsa_kernel\n"
    if ts: out += "; STAMPS " + ",".join(stampnames) + "\n"
    return out

if __name__ == "__main__":
    if len(sys.argv) > 1 and sys.argv[1].startswith("["):
        names = []
        for c in eval(sys.argv[1]):
            n = "kf_" + "_".join("%s%s" % (k, str(v).replace(" ", "").replace("(", "").replace(")", "").replace(",", "-")) for k, v in c.items()) + ".s"
            open(n, "w").write(gen(**c)); names.append(n)
        print(" ".join(names))
    else:
        kw = eval("dict(%s)" % (sys.argv[2] if len(sys.argv) > 2 else ""))
        open(sys.argv[1] if len(sys.argv) > 1 else "k.s", "w").write(gen(**kw))
```
